```python
import torch

def _softmax(x, axis=-1):
    return torch.softmax(x, dim=axis)
def _gelu(x):
    return torch.nn.functional.gelu(x, approximate="tanh")
def _silu(x):
    return torch.nn.functional.silu(x)
def _sigmoid(x):
    return torch.sigmoid(x)
def _layernorm(x, axis=-1, eps=1e-5):
    m = x.mean(dim=axis, keepdim=True)
    v = x.var(dim=axis, keepdim=True, unbiased=False)
    return (x - m) / torch.sqrt(v + eps)
def _scatter_add(tgt, idx, src, axis=0):
    return tgt.clone().index_add_(axis, idx, src)
def _segment_sum(src, seg, n):
    out = torch.zeros((n,) + src.shape[1:], dtype=src.dtype)
    return out.index_add_(0, seg, src)
def _pad(x, pw):
    flat = tuple(v for pair in reversed(pw) for v in pair)
    return torch.nn.functional.pad(x, flat)

kernel_name = 'recurrent_scan__softmax_full_mha__geglu_ffn__prompt'

def setup_inputs():

    _w = (lambda a: (lambda t: t.to(torch.bfloat16) if t.is_floating_point() else t)(torch.as_tensor(a)))
    def _A_setup():
        B, S, D = 1, 2048, 1024
        return {
            "x": _w((lambda *s: torch.randn(*s, dtype=torch.bfloat16) * 0.05)(B, S, D)),
            "wqkv": _w((lambda *s: torch.randn(*s, dtype=torch.bfloat16) * 0.05)(D, 3 * D)),
            "wo": _w((lambda *s: torch.randn(*s, dtype=torch.bfloat16) * 0.05)(D, D)),
        }
    _A_in = _A_setup()

    def _B_setup():
        B, S, D, F = 1, 2048, 1024, 3584
        return {
            "x": _w((lambda *s: torch.randn(*s, dtype=torch.bfloat16) * 0.05)(B, S, D)),
            "w_gate": _w((lambda *s: torch.randn(*s, dtype=torch.bfloat16) * 0.05)(D, F)),
            "w_up": _w((lambda *s: torch.randn(*s, dtype=torch.bfloat16) * 0.05)(D, F)),
            "w_down": _w((lambda *s: torch.randn(*s, dtype=torch.bfloat16) * 0.05)(F, D)),
        }
    _B_in = _B_setup()

    return {
        "A_x": _A_in["x"],
        "A_wqkv": _A_in["wqkv"],
        "A_wo": _A_in["wo"],
        "B_x": _B_in["x"],
        "B_w_gate": _B_in["w_gate"],
        "B_w_up": _B_in["w_up"],
        "B_w_down": _B_in["w_down"],
    }

def reference(A_x, A_wqkv, A_wo, B_x, B_w_gate, B_w_up, B_w_down):
    def _A_ref(x, wqkv, wo):
        B, S, D = x.shape
        H = 32; Dh = D // H
        qkv = (lambda x, *d: x.permute(*d))((x @ wqkv).reshape(B, S, 3, H, Dh), 2, 0, 3, 1, 4)
        q, k, v = qkv[0], qkv[1], qkv[2]
        scale = Dh ** -0.5
        scores = torch.einsum("bhqd,bhkd->bhqk", q, k) * scale
        p = _softmax(scores, axis=-1)
        o = torch.einsum("bhqk,bhkd->bhqd", p, v)
        return (lambda x, *d: x.permute(*d))(o, 0, 2, 1, 3).reshape(B, S, D) @ wo

    def _B_ref(x, w_gate, w_up, w_down):
        return (_gelu(x @ w_gate) * (x @ w_up)) @ w_down

    x = A_x
    xn = _layernorm(x, axis=-1)
    s = _A_ref(xn, A_wqkv, A_wo)
    g = _silu(_B_ref(xn, B_w_gate, B_w_up, B_w_down))
    return x + s * g
```

```python
import struct

class Asm:
    def __init__(self):
        self.lines = []
    def __call__(self, s):
        for l in s.split('\n'):
            l = l.strip()
            if l: self.lines.append("  " + l)
    def label(self, l):
        self.lines.append(l + ":")
    def raw(self, l):
        self.lines.append(l)
    def text(self):
        return "\n".join(self.lines)

def f2u(x):
    return struct.unpack('<I', struct.pack('<f', x))[0]
def fhex(x):
    return "0x%08x" % f2u(x)

def vr(a, n=1):
    return f"v{a}" if n == 1 else f"v[{a}:{a+n-1}]"
def ar(a, n=1):
    return f"a{a}" if n == 1 else f"a[{a}:{a+n-1}]"
def sr(a, n=1):
    return f"s{a}" if n == 1 else f"s[{a}:{a+n-1}]"

MB = 1 << 20
WS_XN = 0
WS_Q  = 4*MB
WS_KV = 8*MB
WS_H  = 16*MB
WS_O  = 32*MB
WS_G  = 36*MB
WS_SIZE = 256*MB

def kernel_header(a, name):
    a.raw(f".globl {name}")
    a.raw(".p2align 8")
    a.raw(f".type {name},@function")
    a.label(name)

def kernel_desc(name, vgpr, sgpr, accum=None):
    if accum is None: accum = (vgpr + 3)//4*4
    return f""".p2align 6
.amdhsa_kernel {name}
  .amdhsa_next_free_vgpr {vgpr}
  .amdhsa_next_free_sgpr {sgpr}
  .amdhsa_accum_offset {accum}
  .amdhsa_group_segment_fixed_size 0
  .amdhsa_kernarg_size 80
  .amdhsa_user_sgpr_count 2
  .amdhsa_user_sgpr_kernarg_segment_ptr 1
  .amdhsa_system_sgpr_workgroup_id_x 1
  .amdhsa_float_denorm_mode_32 3
  .amdhsa_float_denorm_mode_16_64 3
.end_amdhsa_kernel"""

def make_srd(a, d, base, off_imm=None, off_sreg=None, size=None, size_sreg=None):
    if off_imm is None and off_sreg is None:
        if d != base:
            a(f"s_mov_b32 s{d}, s{base}")
            a(f"s_mov_b32 s{d+1}, s{base+1}")
    else:
        o = f"s{off_sreg}" if off_sreg is not None else str(off_imm)
        a(f"s_add_u32 s{d}, s{base}, {o}")
        a(f"s_addc_u32 s{d+1}, s{base+1}, 0")
    if size_sreg is not None: a(f"s_mov_b32 s{d+2}, s{size_sreg}")
    else: a(f"s_mov_b32 s{d+2}, {size}")
    a(f"s_mov_b32 s{d+3}, 0x20000")

HEADER = """; Kernarg layout for this problem (80 bytes, ptrs only, base s[0:1]):
"""

def assemble_file(kernels):
    out = [HEADER.rstrip()]
    for (name, grid, block, lds, text, desc) in kernels:
        out.append(f"; @launch kernel={name} grid=({grid},1,1) block=({block},1,1) lds={lds}")
    out.append('.amdgcn_target "amdgcn-amd-amdhsa--gfx950"')
    out.append('.text')
    seen = set()
    for (name, grid, block, lds, text, desc) in kernels:
        if name in seen: continue
        seen.add(name); out.append(text)
    out.append('.section .rodata,"a"')
    seen = set()
    for (name, grid, block, lds, text, desc) in kernels:
        if name in seen: continue
        seen.add(name); out.append(desc)
    return "\n".join(out) + "\n"

import os
STAMP = os.environ.get("STAMP", "0") == "1"
WS_STAMP = 48*MB
def stamp(a, idx):
    if not STAMP: return
    a(f"s_memtime s[{64+4*idx}:{65+4*idx}]")
    a(f"s_memrealtime s[{66+4*idx}:{67+4*idx}]")
def stamp_flush(a, kidx, wave_sreg, nst, vtmp=1):
    if not STAMP: return
    a("s_load_dwordx2 s[96:97], s[0:1], 72")
    a("s_waitcnt lgkmcnt(0)")
    a(f"s_add_u32 s98, s2, {kidx*256}")
    a("s_lshl_b32 s98, s98, 4")
    a(f"s_add_u32 s98, s98, s{wave_sreg}")
    a("s_lshl_b32 s98, s98, 6")
    a(f"s_add_u32 s98, s98, {WS_STAMP}")
    a("s_add_u32 s96, s96, s98")
    a("s_addc_u32 s97, s97, 0")
    a(f"v_mov_b32 v{vtmp}, 0")
    vals = [str(nst), "0"]
    for i in range(nst): vals += [f"s{64+4*i}", f"s{66+4*i}"]
    for k, s in enumerate(vals):
        a(f"v_mov_b32 v{vtmp+1}, {s}")
        a(f"global_store_dword v{vtmp}, v{vtmp+1}, s[96:97] offset:{4*k}")
    a("s_waitcnt vmcnt(0)")
def sgprs(n):
    return 102 if STAMP else n
```

```python
import re, sys

REG = re.compile(r'^(-|abs\(|\|)?([vas])(\d+)\)?\|?$')
RNG = re.compile(r'^(-|abs\(|\|)?([vas])\[(\d+):(\d+)\]\)?\|?$')

def regs_of(tok):
    tok = tok.strip()
    m = REG.match(tok)
    if m: return {(m.group(2), int(m.group(3)))}
    m = RNG.match(tok)
    if m: return {(m.group(2), i) for i in range(int(m.group(3)), int(m.group(4)) + 1)}
    if tok == 'vcc': return {('s', 'vcc')}
    if tok in ('vcc_lo', 'vcc_hi'): return {('s', 'vcc')}
    if tok == 'exec': return {('s', 'exec')}
    if tok == 'm0': return {('s', 'm0')}
    return set()

TRANS = ('v_exp_f32', 'v_log_f32', 'v_rcp_f32', 'v_rsq_f32', 'v_sqrt_f32', 'v_sin_f32', 'v_cos_f32', 'v_rcp_iflag_f32')

class I:
    pass

def parse(text):
    ins = []; labels = {}
    for ln, raw in enumerate(text.split('\n'), 1):
        s = raw.split(';')[0].split('//')[0].strip()
        if not s: continue
        if s.startswith('.') and not s.endswith(':'):
            continue
        m = re.match(r'^([\w.$]+):$', s)
        if m:
            labels[m.group(1)] = len(ins); continue
        parts = s.split(None, 1)
        op = parts[0]
        for suf in ('_e32', '_e64', '_dpp', '_sdwa'):
            if op.endswith(suf): op = op[:-len(suf)]
        rest = parts[1] if len(parts) > 1 else ''
        ops = [x.strip() for x in rest.split(',')] if rest else []
        mods = ''
        if ops:
            l = ops[-1].split(None, 1)
            if l:
                ops[-1] = l[0]
                mods = l[1] if len(l) > 1 else ''
        i = I(); i.op = op; i.ops = ops; i.mods = mods; i.ln = ln; i.raw = raw.strip()
        classify(i)
        ins.append(i)
    return ins, labels

def classify(i):
    op = i.op; o = i.ops
    R = lambda k: regs_of(o[k]) if k < len(o) else set()
    i.w = set(); i.r = set(); i.kind = 'other'; i.srcA = i.srcB = i.srcC = set(); i.passes = 0
    i.ws = 1
    i.dpp = ('row_' in i.mods or 'quad_perm' in i.mods or 'wave_' in i.mods or 'row_bcast' in i.mods)
    if op == 's_nop':
        i.ws = int(o[0], 0) + 1; i.kind = 'nop'; return
    if op.startswith('v_mfma'):
        i.kind = 'mfma'; i.w = R(0); i.srcA = R(1); i.srcB = R(2); i.srcC = R(3); i.r = i.srcA | i.srcB | i.srcC
        i.passes = 8 if '32x32x16' in op else 4 if '16x16x32' in op else None
        assert i.passes, op
        return
    if op.startswith('v_cmp'):
        i.kind = 'valu'; i.w = R(0); i.r = R(1) | R(2)
        if op.startswith('v_cmpx'): i.w |= {('s', 'exec')}
        return
    if op in ('v_readfirstlane_b32', 'v_readlane_b32'):
        i.kind = 'valu'; i.w = R(0); i.r = R(1) | R(2); i.lane = True; return
    if (op.startswith('v_permlane') and 'swap' in op) or op == 'v_swap_b32':
        i.kind = 'valu'; i.w = R(0) | R(1); i.r = R(0) | R(1); return
    if op in ('v_add_co_u32', 'v_sub_co_u32'):
        i.kind = 'valu'; i.w = R(0) | R(1); i.r = R(2) | R(3); return
    if op in ('v_addc_co_u32', 'v_subb_co_u32'):
        i.kind = 'valu'; i.w = R(0) | R(1); i.r = R(2) | R(3) | R(4); return
    if op.startswith('v_'):
        i.kind = 'valu'; i.w = R(0)
        for k in range(1, len(o)): i.r |= R(k)
        if op in ('v_fmac_f32', 'v_pk_fmac_f16', 'v_dot2c_f32_bf16') or i.dpp: i.r |= R(0)
        if op == 'v_cndmask_b32' and len(o) == 3: i.r |= {('s', 'vcc')}
        return
    if op in ('buffer_inv', 'buffer_wbl2'):
        i.kind = 'vmem'; return
    if op.startswith('buffer_load') or op.startswith('buffer_atomic') and 'sc0' in i.mods:
        i.kind = 'vmem'
        if 'lds' in i.mods.split():
            i.r = R(0) | R(1) | R(2) | {('s', 'm0')}; i.ldsdma = True
        else:
            i.w = R(0); i.r = R(1) | R(2) | R(3)
        return
    if op.startswith('buffer_store') or op.startswith('buffer_atomic'):
        i.kind = 'vmem'; i.r = R(0) | R(1) | R(2) | R(3); i.sdata = R(0); return
    if op.startswith('global_load_lds'):
        i.kind = 'vmem'; i.r = R(0) | R(1) | {('s', 'm0')}; i.ldsdma = True; return
    if op.startswith('global_load'):
        i.kind = 'vmem'; i.w = R(0); i.r = R(1) | R(2); return
    if op.startswith('global_store'):
        i.kind = 'vmem'; i.r = R(0) | R(1) | R(2); i.sdata = R(1); return
    if op.startswith('global_atomic'):
        i.kind = 'vmem'
        if 'sc0' in i.mods: i.w = R(0); i.r = R(1) | R(2) | R(3)
        else: i.r = R(0) | R(1) | R(2)
        return
    if op.startswith('ds_read') or op.startswith('ds_bpermute') or op.startswith('ds_swizzle') or op.startswith('ds_permute'):
        i.kind = 'ds'; i.w = R(0)
        for k in range(1, len(o)): i.r |= R(k)
        return
    if op.startswith('ds_'):
        i.kind = 'ds'
        if 'rtn' in op:
            i.w = R(0)
            for k in range(1, len(o)): i.r |= R(k)
        else:
            for k in range(0, len(o)): i.r |= R(k)
        return
    if op.startswith('s_'):
        i.kind = 'salu'
        if op.startswith('s_cmp') or op.startswith('s_cbranch') or op in ('s_branch', 's_waitcnt', 's_barrier', 's_endpgm', 's_setprio', 's_sleep', 's_bitcmp1_b32', 's_bitcmp0_b32'):
            for k in range(len(o)): i.r |= R(k)
        else:
            i.w = R(0)
            for k in range(1, len(o)): i.r |= R(k)
            if 'saveexec' in op: i.w |= {('s', 'exec')}
        return
    raise ValueError("unknown op " + i.raw)

def need(p, c):
    n = 0
    vw = {x for x in p.w if x[0] in 'va'}
    sw = {x for x in p.w if x[0] == 's'}
    if p.kind == 'mfma':
        P = p.passes
        if c.kind == 'mfma':
            if c.srcC & p.w:
                if c.srcC == p.w and c.passes == P: n = max(n, 0)
                else: n = max(n, {4: 6, 8: 10}[P])
            if (c.srcA | c.srcB) & p.w: n = max(n, {4: 8, 8: 12}[P])
            if (c.w & p.w) and not (c.srcC & p.w):
                n = max(n, {4: 6, 8: 10}[P]) if c.passes != P else max(n, 0)
        elif c.kind in ('valu', 'vmem', 'ds'):
            if (c.r | c.w) & p.w: n = max(n, {4: 8, 8: 12}[P])
        if c.kind == 'valu' and (c.w & p.srcC): n = max(n, {4: 3, 8: 7}[P])
    if p.kind == 'valu':
        if c.kind == 'mfma' and (c.r & vw): n = max(n, 2)
        if c.kind == 'mfma' and ('s', 'exec') in sw: n = max(n, 4)
        if c.kind == 'vmem' and (c.r & sw): n = max(n, 5)
        if c.kind == 'valu' and (c.r & sw): n = max(n, 2)
        if c.kind == 'valu' and getattr(c, 'lane', False) and (c.r & vw): n = max(n, 1)
        if c.kind == 'valu' and getattr(c, 'lane', False) and (c.r & sw): n = max(n, 4)
        if c.kind == 'valu' and c.dpp and (c.r & vw): n = max(n, 2)
        if c.kind == 'valu' and c.op.startswith('v_permlane') and (c.r & vw): n = max(n, 2)
        if p.op in TRANS and c.kind == 'valu' and c.op not in TRANS and (c.r & vw): n = max(n, 1)
        if p.op in TRANS and c.kind in ('mfma',) and (c.r & vw): n = max(n, 2)
        if ('op_sel' in p.mods or 'dst_sel' in p.mods) and c.kind == 'valu' and ((c.r | c.w) & vw): n = max(n, 1)
    if p.kind == 'salu':
        if ('s', 'm0') in p.w and getattr(c, 'ldsdma', False): n = max(n, 1)
    if p.kind == 'vmem' and hasattr(p, 'sdata') and len(p.sdata) >= 3:
        if c.w & p.sdata: n = max(n, 2 if c.kind == 'valu' else 1)
    return n

def check(text, verbose=True):
    ins, labels = parse(text)
    n = len(ins)
    preds = [[] for _ in range(n + 1)]
    for k, i in enumerate(ins):
        if i.op in ('s_endpgm',): continue
        if i.op == 's_branch':
            preds[labels[i.ops[0]]].append(k); continue
        if i.op.startswith('s_cbranch'):
            preds[labels[i.ops[0]]].append(k)
        preds[k + 1].append(k)
    MAXW = 12
    bad = 0
    for k, c in enumerate(ins):
        if c.kind in ('nop',): continue
        best = {}
        stack = [(p, 0) for p in preds[k]]
        while stack:
            p, d = stack.pop()
            if p in best and best[p] <= d: continue
            best[p] = d
            pi = ins[p]
            nd = need(pi, c)
            if nd > d:
                bad += 1
                if verbose: print(f"HAZARD: line {pi.ln} [{pi.raw}] -> line {c.ln} [{c.raw}] needs {nd} has {d}")
            d2 = d + pi.ws
            if d2 < MAXW:
                for q in preds[p]: stack.append((q, d2))
    return bad

if __name__ == '__main__':
    b = check(open(sys.argv[1]).read())
    print("hazards:", b)
    sys.exit(1 if b else 0)
```

```python
import struct

class Asm:
    def __init__(self):
        self.lines = []
    def __call__(self, s):
        for l in s.split('\n'):
            l = l.strip()
            if l: self.lines.append("  " + l)
    def label(self, l):
        self.lines.append(l + ":")
    def raw(self, l):
        self.lines.append(l)
    def text(self):
        return "\n".join(self.lines)

def f2u(x):
    return struct.unpack('<I', struct.pack('<f', x))[0]
def fhex(x):
    return "0x%08x" % f2u(x)

def vr(a, n=1):
    return f"v{a}" if n == 1 else f"v[{a}:{a+n-1}]"
def ar(a, n=1):
    return f"a{a}" if n == 1 else f"a[{a}:{a+n-1}]"
def sr(a, n=1):
    return f"s{a}" if n == 1 else f"s[{a}:{a+n-1}]"

MB = 1 << 20
WS_XN = 0
WS_Q  = 4*MB
WS_KV = 8*MB
WS_H  = 16*MB
WS_O  = 32*MB
WS_G  = 36*MB
WS_SIZE = 256*MB

def kernel_header(a, name):
    a.raw(f".globl {name}")
    a.raw(".p2align 8")
    a.raw(f".type {name},@function")
    a.label(name)

def kernel_desc(name, vgpr, sgpr, accum=None):
    if accum is None: accum = (vgpr + 3)//4*4
    return f""".p2align 6
.amdhsa_kernel {name}
  .amdhsa_next_free_vgpr {vgpr}
  .amdhsa_next_free_sgpr {sgpr}
  .amdhsa_accum_offset {accum}
  .amdhsa_group_segment_fixed_size 0
  .amdhsa_kernarg_size 80
  .amdhsa_user_sgpr_count 2
  .amdhsa_user_sgpr_kernarg_segment_ptr 1
  .amdhsa_system_sgpr_workgroup_id_x 1
  .amdhsa_float_denorm_mode_32 3
  .amdhsa_float_denorm_mode_16_64 3
.end_amdhsa_kernel"""

def make_srd(a, d, base, off_imm=None, off_sreg=None, size=None, size_sreg=None):
    if off_imm is None and off_sreg is None:
        if d != base:
            a(f"s_mov_b32 s{d}, s{base}")
            a(f"s_mov_b32 s{d+1}, s{base+1}")
    else:
        o = f"s{off_sreg}" if off_sreg is not None else str(off_imm)
        a(f"s_add_u32 s{d}, s{base}, {o}")
        a(f"s_addc_u32 s{d+1}, s{base+1}, 0")
    if size_sreg is not None: a(f"s_mov_b32 s{d+2}, s{size_sreg}")
    else: a(f"s_mov_b32 s{d+2}, {size}")
    a(f"s_mov_b32 s{d+3}, 0x20000")

HEADER = """; Kernarg layout for this problem (80 bytes, ptrs only, base s[0:1]):
"""

def assemble_file(kernels):
    out = [HEADER.rstrip()]
    for (name, grid, block, lds, text, desc) in kernels:
        out.append(f"; @launch kernel={name} grid=({grid},1,1) block=({block},1,1) lds={lds}")
    out.append('.amdgcn_target "amdgcn-amd-amdhsa--gfx950"')
    out.append('.text')
    seen = set()
    for (name, grid, block, lds, text, desc) in kernels:
        if name in seen: continue
        seen.add(name); out.append(text)
    out.append('.section .rodata,"a"')
    seen = set()
    for (name, grid, block, lds, text, desc) in kernels:
        if name in seen: continue
        seen.add(name); out.append(desc)
    return "\n".join(out) + "\n"

import os
STAMP = os.environ.get("STAMP", "0") == "1"
WS_STAMP = 48*MB
def stamp(a, idx):
    if not STAMP: return
    a(f"s_memtime s[{64+4*idx}:{65+4*idx}]")
    a(f"s_memrealtime s[{66+4*idx}:{67+4*idx}]")
def stamp_flush(a, kidx, wave_sreg, nst, vtmp=1):
    if not STAMP: return
    a("s_load_dwordx2 s[96:97], s[0:1], 72")
    a("s_waitcnt lgkmcnt(0)")
    a(f"s_add_u32 s98, s2, {kidx*256}")
    a("s_lshl_b32 s98, s98, 4")
    a(f"s_add_u32 s98, s98, s{wave_sreg}")
    a("s_lshl_b32 s98, s98, 7")
    a(f"s_add_u32 s98, s98, {WS_STAMP}")
    a("s_add_u32 s96, s96, s98")
    a("s_addc_u32 s97, s97, 0")
    a(f"v_mov_b32 v{vtmp}, 0")
    vals = [str(nst), "0"]
    for i in range(nst): vals += [f"s{64+4*i}", f"s{66+4*i}"]
    for k, s in enumerate(vals):
        a(f"v_mov_b32 v{vtmp+1}, {s}")
        a(f"global_store_dword v{vtmp}, v{vtmp+1}, s[96:97] offset:{4*k}")
    a("s_waitcnt vmcnt(0)")
def sgprs(n):
    return 102 if STAMP else n

WS_F = 40*MB
F_A = 0
F_H = 8192
F_O = 16384
F_SIZE = 24576
SPIN_LIMIT = 1 << 20

def poll_global(a, tag, srd, voff, soff, vt, wide, cnt_s, hook=None):
    ld = (f"buffer_load_dwordx4 v[{vt}:{vt+3}], v{voff}, {srd}, {soff} offen sc1" if wide
          else f"buffer_load_dword v{vt}, v{voff}, {srd}, {soff} offen sc1")
    a(f"s_mov_b32 s{cnt_s}, {SPIN_LIMIT}")
    if hook:
        a(ld)
        a("s_waitcnt vmcnt(0)")
        for x in hook: a(x)
        a(f"s_branch {tag}_chk")
    a.label(f"{tag}_poll")
    a(ld)
    a("s_waitcnt vmcnt(0)")
    a.label(f"{tag}_chk")
    if wide:
        a(f"v_and_b32 v{vt}, v{vt}, v{vt+1}")
        a(f"v_and_b32 v{vt+2}, v{vt+2}, v{vt+3}")
        a(f"v_and_b32 v{vt}, v{vt}, v{vt+2}")
    a(f"v_cmp_ne_u32 vcc, 1, v{vt}")
    a(f"s_cbranch_vccz {tag}_ok")
    a("s_sleep 8")
    a(f"s_sub_u32 s{cnt_s}, s{cnt_s}, 1")
    a(f"s_cmp_lg_u32 s{cnt_s}, 0")
    a(f"s_cbranch_scc1 {tag}_poll")
    a.label(f"{tag}_ok")

def poll_lds(a, tag, vaddr, off, vt, wide, cnt_s):
    a(f"s_mov_b32 s{cnt_s}, {SPIN_LIMIT*8}")
    a.label(f"{tag}_poll")
    if wide:
        a(f"ds_read_b128 v[{vt}:{vt+3}], v{vaddr} offset:{off}")
        a("s_waitcnt lgkmcnt(0)")
        a(f"v_and_b32 v{vt}, v{vt}, v{vt+1}")
        a(f"v_and_b32 v{vt+2}, v{vt+2}, v{vt+3}")
        a(f"v_and_b32 v{vt}, v{vt}, v{vt+2}")
    else:
        a(f"ds_read_b32 v{vt}, v{vaddr} offset:{off}")
        a("s_waitcnt lgkmcnt(0)")
    a(f"v_cmp_ne_u32 vcc, 1, v{vt}")
    a(f"s_cbranch_vccz {tag}_ok")
    a("s_sleep 1")
    a(f"s_sub_u32 s{cnt_s}, s{cnt_s}, 1")
    a(f"s_cmp_lg_u32 s{cnt_s}, 0")
    a(f"s_cbranch_scc1 {tag}_poll")
    a.label(f"{tag}_ok")

def wg_signal(a, tag, lds_addr, nwaves, srd, soff, v0, v1, v2):
    a(f"v_mov_b32 v{v0}, {lds_addr}")
    a(f"v_mov_b32 v{v1}, 1")
    a("s_mov_b64 exec, 1")
    a(f"ds_add_rtn_u32 v{v2}, v{v0}, v{v1}")
    a(f"v_mov_b32 v{v0}, 0")
    a("s_waitcnt lgkmcnt(0)")
    a(f"v_cmp_eq_u32 vcc, {nwaves-1}, v{v2}")
    a(f"s_cbranch_vccz {tag}_nosig")
    a(f"buffer_store_dword v{v1}, v{v0}, {srd}, {soff} offen sc1")
    a.label(f"{tag}_nosig")
    a("s_mov_b64 exec, -1")
```

```python
import struct

class Asm:
    def __init__(self):
        self.lines = []
    def __call__(self, s):
        for l in s.split('\n'):
            l = l.strip()
            if l: self.lines.append("  " + l)
    def label(self, l):
        self.lines.append(l + ":")
    def raw(self, l):
        self.lines.append(l)
    def text(self):
        return "\n".join(self.lines)

def f2u(x):
    return struct.unpack('<I', struct.pack('<f', x))[0]
def fhex(x):
    return "0x%08x" % f2u(x)

def vr(a, n=1):
    return f"v{a}" if n == 1 else f"v[{a}:{a+n-1}]"
def ar(a, n=1):
    return f"a{a}" if n == 1 else f"a[{a}:{a+n-1}]"
def sr(a, n=1):
    return f"s{a}" if n == 1 else f"s[{a}:{a+n-1}]"

MB = 1 << 20
WS_XN = 0
WS_Q  = 4*MB
WS_KV = 8*MB
WS_H  = 16*MB
WS_O  = 32*MB
WS_G  = 36*MB
WS_SIZE = 256*MB

def kernel_header(a, name):
    a.raw(f".globl {name}")
    a.raw(".p2align 8")
    a.raw(f".type {name},@function")
    a.label(name)

def kernel_desc(name, vgpr, sgpr, accum=None):
    if accum is None: accum = (vgpr + 3)//4*4
    return f""".p2align 6
.amdhsa_kernel {name}
  .amdhsa_next_free_vgpr {vgpr}
  .amdhsa_next_free_sgpr {sgpr}
  .amdhsa_accum_offset {accum}
  .amdhsa_group_segment_fixed_size 0
  .amdhsa_kernarg_size 80
  .amdhsa_user_sgpr_count 2
  .amdhsa_user_sgpr_kernarg_segment_ptr 1
  .amdhsa_system_sgpr_workgroup_id_x 1
  .amdhsa_float_denorm_mode_32 3
  .amdhsa_float_denorm_mode_16_64 3
.end_amdhsa_kernel"""

def make_srd(a, d, base, off_imm=None, off_sreg=None, size=None, size_sreg=None):
    if off_imm is None and off_sreg is None:
        if d != base:
            a(f"s_mov_b32 s{d}, s{base}")
            a(f"s_mov_b32 s{d+1}, s{base+1}")
    else:
        o = f"s{off_sreg}" if off_sreg is not None else str(off_imm)
        a(f"s_add_u32 s{d}, s{base}, {o}")
        a(f"s_addc_u32 s{d+1}, s{base+1}, 0")
    if size_sreg is not None: a(f"s_mov_b32 s{d+2}, s{size_sreg}")
    else: a(f"s_mov_b32 s{d+2}, {size}")
    a(f"s_mov_b32 s{d+3}, 0x20000")

HEADER = """; Kernarg layout for this problem (80 bytes, ptrs only, base s[0:1]):
"""

def assemble_file(kernels):
    out = [HEADER.rstrip()]
    for (name, grid, block, lds, text, desc) in kernels:
        out.append(f"; @launch kernel={name} grid=({grid},1,1) block=({block},1,1) lds={lds}")
    out.append('.amdgcn_target "amdgcn-amd-amdhsa--gfx950"')
    out.append('.text')
    seen = set()
    for (name, grid, block, lds, text, desc) in kernels:
        if name in seen: continue
        seen.add(name); out.append(text)
    out.append('.section .rodata,"a"')
    seen = set()
    for (name, grid, block, lds, text, desc) in kernels:
        if name in seen: continue
        seen.add(name); out.append(desc)
    return "\n".join(out) + "\n"

import os
STAMP = os.environ.get("STAMP", "0") == "1"
WS_STAMP = 48*MB
def stamp(a, idx):
    if not STAMP: return
    a(f"s_memtime s[{64+4*idx}:{65+4*idx}]")
    a(f"s_memrealtime s[{66+4*idx}:{67+4*idx}]")
def stamp_flush(a, kidx, wave_sreg, nst, vtmp=1):
    if not STAMP: return
    if os.environ.get("DBG"):
        wg = int(os.environ["DBG"]); uid = len(a.lines)
        a("s_load_dwordx2 s[96:97], s[0:1], 64")
        a("s_waitcnt lgkmcnt(0)")
        a(f"s_cmp_lg_u32 s2, {wg}")
        a(f"s_cbranch_scc1 dbg_skip{uid}")
        a(f"s_and_b32 s98, s{wave_sreg}, 3")
        a("s_cmp_lg_u32 s98, 0")
        a(f"s_cbranch_scc1 dbg_skip{uid}")
        a(f"s_add_u32 s96, s96, {512*(1-kidx)}")
        a("s_addc_u32 s97, s97, 0")
        if kidx == 0: idx = [(0, 0), (1, 1)]
        elif nst == 7: idx = [(2+i, i) for i in range(7)]
        else: idx = [(9+i, i+1) for i in range(7)]
        a(f"v_mov_b32 v{vtmp}, 0")
        for k, i in idx:
            a(f"v_mov_b32 v{vtmp+1}, s{66+4*i}")
            a(f"global_store_dword v{vtmp}, v{vtmp+1}, s[96:97] offset:{4*k}")
        a("s_waitcnt vmcnt(0)")
        a.label(f"dbg_skip{uid}")
        return
    a("s_load_dwordx2 s[96:97], s[0:1], 72")
    a("s_waitcnt lgkmcnt(0)")
    a(f"s_add_u32 s98, s2, {kidx*256}")
    a("s_lshl_b32 s98, s98, 4")
    a(f"s_add_u32 s98, s98, s{wave_sreg}")
    a("s_lshl_b32 s98, s98, 7")
    a(f"s_add_u32 s98, s98, {WS_STAMP}")
    a("s_add_u32 s96, s96, s98")
    a("s_addc_u32 s97, s97, 0")
    a(f"v_mov_b32 v{vtmp}, 0")
    vals = [str(nst), "0"]
    for i in range(nst): vals += [f"s{64+4*i}", f"s{66+4*i}"]
    for k, s in enumerate(vals):
        a(f"v_mov_b32 v{vtmp+1}, {s}")
        a(f"global_store_dword v{vtmp}, v{vtmp+1}, s[96:97] offset:{4*k}")
    a("s_waitcnt vmcnt(0)")
def sgprs(n):
    return 102 if STAMP else n

WS_F = 40*MB
F_A = 0
F_H = 8192
F_O = 16384
F_SIZE = 24576
SPIN_LIMIT = 1 << 20

def poll_global(a, tag, srd, voff, soff, vt, wide, cnt_s, hook=None):
    ld = (f"buffer_load_dwordx4 v[{vt}:{vt+3}], v{voff}, {srd}, {soff} offen sc1" if wide
          else f"buffer_load_dword v{vt}, v{voff}, {srd}, {soff} offen sc1")
    a(f"s_mov_b32 s{cnt_s}, {SPIN_LIMIT}")
    if hook:
        a(ld)
        a("s_waitcnt vmcnt(0)")
        for x in hook: a(x)
        a(f"s_branch {tag}_chk")
    a.label(f"{tag}_poll")
    a(ld)
    a("s_waitcnt vmcnt(0)")
    a.label(f"{tag}_chk")
    if wide:
        a(f"v_and_b32 v{vt}, v{vt}, v{vt+1}")
        a(f"v_and_b32 v{vt+2}, v{vt+2}, v{vt+3}")
        a(f"v_and_b32 v{vt}, v{vt}, v{vt+2}")
    a(f"v_cmp_ne_u32 vcc, 1, v{vt}")
    a(f"s_cbranch_vccz {tag}_ok")
    a("s_sleep 8")
    a(f"s_sub_u32 s{cnt_s}, s{cnt_s}, 1")
    a(f"s_cmp_lg_u32 s{cnt_s}, 0")
    a(f"s_cbranch_scc1 {tag}_poll")
    a.label(f"{tag}_ok")

def poll_lds(a, tag, vaddr, off, vt, wide, cnt_s):
    a(f"s_mov_b32 s{cnt_s}, {SPIN_LIMIT*8}")
    a.label(f"{tag}_poll")
    if wide:
        a(f"ds_read_b128 v[{vt}:{vt+3}], v{vaddr} offset:{off}")
        a("s_waitcnt lgkmcnt(0)")
        a(f"v_and_b32 v{vt}, v{vt}, v{vt+1}")
        a(f"v_and_b32 v{vt+2}, v{vt+2}, v{vt+3}")
        a(f"v_and_b32 v{vt}, v{vt}, v{vt+2}")
    else:
        a(f"ds_read_b32 v{vt}, v{vaddr} offset:{off}")
        a("s_waitcnt lgkmcnt(0)")
    a(f"v_cmp_ne_u32 vcc, 1, v{vt}")
    a(f"s_cbranch_vccz {tag}_ok")
    a("s_sleep 1")
    a(f"s_sub_u32 s{cnt_s}, s{cnt_s}, 1")
    a(f"s_cmp_lg_u32 s{cnt_s}, 0")
    a(f"s_cbranch_scc1 {tag}_poll")
    a.label(f"{tag}_ok")

def wg_signal(a, tag, lds_addr, nwaves, srd, soff, v0, v1, v2):
    a(f"v_mov_b32 v{v0}, {lds_addr}")
    a(f"v_mov_b32 v{v1}, 1")
    a("s_mov_b64 exec, 1")
    a(f"ds_add_rtn_u32 v{v2}, v{v0}, v{v1}")
    a(f"v_mov_b32 v{v0}, 0")
    a("s_waitcnt lgkmcnt(0)")
    a(f"v_cmp_eq_u32 vcc, {nwaves-1}, v{v2}")
    a(f"s_cbranch_vccz {tag}_nosig")
    a(f"buffer_store_dword v{v1}, v{v0}, {srd}, {soff} offen sc1")
    a.label(f"{tag}_nosig")
    a("s_mov_b64 exec, -1")
```

```python
import struct

class Asm:
    def __init__(self):
        self.lines = []
    def __call__(self, s):
        for l in s.split('\n'):
            l = l.strip()
            if l: self.lines.append("  " + l)
    def label(self, l):
        self.lines.append(l + ":")
    def raw(self, l):
        self.lines.append(l)
    def text(self):
        return "\n".join(self.lines)

def f2u(x):
    return struct.unpack('<I', struct.pack('<f', x))[0]
def fhex(x):
    return "0x%08x" % f2u(x)

def vr(a, n=1):
    return f"v{a}" if n == 1 else f"v[{a}:{a+n-1}]"
def ar(a, n=1):
    return f"a{a}" if n == 1 else f"a[{a}:{a+n-1}]"
def sr(a, n=1):
    return f"s{a}" if n == 1 else f"s[{a}:{a+n-1}]"

MB = 1 << 20
WS_XN = 0
WS_Q  = 4*MB
WS_KV = 8*MB
WS_H  = 16*MB
WS_O  = 32*MB
WS_G  = 36*MB
WS_SIZE = 256*MB

def kernel_header(a, name):
    a.raw(f".globl {name}")
    a.raw(".p2align 8")
    a.raw(f".type {name},@function")
    a.label(name)

def kernel_desc(name, vgpr, sgpr, accum=None):
    if accum is None: accum = (vgpr + 3)//4*4
    return f""".p2align 6
.amdhsa_kernel {name}
  .amdhsa_next_free_vgpr {vgpr}
  .amdhsa_next_free_sgpr {sgpr}
  .amdhsa_accum_offset {accum}
  .amdhsa_group_segment_fixed_size 0
  .amdhsa_kernarg_size 80
  .amdhsa_user_sgpr_count 2
  .amdhsa_user_sgpr_kernarg_segment_ptr 1
  .amdhsa_system_sgpr_workgroup_id_x 1
  .amdhsa_float_denorm_mode_32 3
  .amdhsa_float_denorm_mode_16_64 3
.end_amdhsa_kernel"""

def make_srd(a, d, base, off_imm=None, off_sreg=None, size=None, size_sreg=None):
    if off_imm is None and off_sreg is None:
        if d != base:
            a(f"s_mov_b32 s{d}, s{base}")
            a(f"s_mov_b32 s{d+1}, s{base+1}")
    else:
        o = f"s{off_sreg}" if off_sreg is not None else str(off_imm)
        a(f"s_add_u32 s{d}, s{base}, {o}")
        a(f"s_addc_u32 s{d+1}, s{base+1}, 0")
    if size_sreg is not None: a(f"s_mov_b32 s{d+2}, s{size_sreg}")
    else: a(f"s_mov_b32 s{d+2}, {size}")
    a(f"s_mov_b32 s{d+3}, 0x20000")

HEADER = """; Kernarg layout for this problem (80 bytes, ptrs only, base s[0:1]):
"""

def assemble_file(kernels):
    out = [HEADER.rstrip()]
    for (name, grid, block, lds, text, desc) in kernels:
        out.append(f"; @launch kernel={name} grid=({grid},1,1) block=({block},1,1) lds={lds}")
    out.append('.amdgcn_target "amdgcn-amd-amdhsa--gfx950"')
    out.append('.text')
    seen = set()
    for (name, grid, block, lds, text, desc) in kernels:
        if name in seen: continue
        seen.add(name); out.append(text)
    out.append('.section .rodata,"a"')
    seen = set()
    for (name, grid, block, lds, text, desc) in kernels:
        if name in seen: continue
        seen.add(name); out.append(desc)
    return "\n".join(out) + "\n"

import os
STAMP = os.environ.get("STAMP", "0") == "1"
WS_STAMP = 48*MB
def stamp(a, idx):
    if not STAMP: return
    a(f"s_memtime s[{64+4*idx}:{65+4*idx}]")
    a(f"s_memrealtime s[{66+4*idx}:{67+4*idx}]")
def stamp_flush(a, kidx, wave_sreg, nst, vtmp=1):
    if not STAMP: return
    if os.environ.get("AMP"):
        i0, i1 = [int(x) for x in os.environ["AMP"].split(",")]; uid = len(a.lines)
        a("s_load_dwordx2 s[96:97], s[0:1], 72")
        a("s_waitcnt lgkmcnt(0)")
        a("s_cmp_lg_u32 s2, 100")
        a(f"s_cbranch_scc1 amp_skip{uid}")
        a(f"s_add_u32 s96, s96, {WS_STAMP}")
        a("s_addc_u32 s97, s97, 0")
        if kidx == 0:
            a(f"v_mov_b32 v{vtmp}, 0"); a(f"v_mov_b32 v{vtmp+1}, s66")
            a(f"global_store_dword v{vtmp}, v{vtmp+1}, s[96:97]")
        elif nst == 8:
            a(f"s_cmp_lg_u32 s{wave_sreg}, 4")
            a(f"s_cbranch_scc1 amp_skip{uid}")
            a("s_load_dword s98, s[96:97], 0")
            a("s_waitcnt lgkmcnt(0)")
            A = "s98" if i0 < 0 else f"s{66+4*i0}"
            a(f"s_sub_u32 s98, s{66+4*i1}, {A}")
            a("s_min_u32 s98, s98, 20000")
            a("s_lshl_b32 s98, s98, 2")
            a.label(f"amp_spin{uid}")
            a("s_memrealtime s[100:101]")
            a("s_waitcnt lgkmcnt(0)")
            a(f"s_sub_u32 s99, s100, s{66+4*7}")
            a("s_cmp_lt_u32 s99, s98")
            a(f"s_cbranch_scc1 amp_spin{uid}")
        a.label(f"amp_skip{uid}")
        return
    if os.environ.get("DBG"):
        wg = int(os.environ["DBG"]); uid = len(a.lines)
        a("s_load_dwordx2 s[96:97], s[0:1], 64")
        a("s_waitcnt lgkmcnt(0)")
        a(f"s_cmp_lg_u32 s2, {wg}")
        a(f"s_cbranch_scc1 dbg_skip{uid}")
        a(f"s_and_b32 s98, s{wave_sreg}, 3")
        a("s_cmp_lg_u32 s98, 0")
        a(f"s_cbranch_scc1 dbg_skip{uid}")
        a(f"s_add_u32 s96, s96, {512*(1-kidx)}")
        a("s_addc_u32 s97, s97, 0")
        if kidx == 0: idx = [(0, 0), (1, 1)]
        elif nst == 7: idx = [(2+i, i) for i in range(7)]
        else: idx = [(9+i, i+1) for i in range(7)]
        a(f"v_mov_b32 v{vtmp}, 0")
        for k, i in idx:
            a(f"v_mov_b32 v{vtmp+1}, s{66+4*i}")
            a(f"global_store_dword v{vtmp}, v{vtmp+1}, s[96:97] offset:{4*k}")
        a("s_waitcnt vmcnt(0)")
        a.label(f"dbg_skip{uid}")
        return
    a("s_load_dwordx2 s[96:97], s[0:1], 72")
    a("s_waitcnt lgkmcnt(0)")
    a(f"s_add_u32 s98, s2, {kidx*256}")
    a("s_lshl_b32 s98, s98, 4")
    a(f"s_add_u32 s98, s98, s{wave_sreg}")
    a("s_lshl_b32 s98, s98, 7")
    a(f"s_add_u32 s98, s98, {WS_STAMP}")
    a("s_add_u32 s96, s96, s98")
    a("s_addc_u32 s97, s97, 0")
    a(f"v_mov_b32 v{vtmp}, 0")
    vals = [str(nst), "0"]
    for i in range(nst): vals += [f"s{64+4*i}", f"s{66+4*i}"]
    for k, s in enumerate(vals):
        a(f"v_mov_b32 v{vtmp+1}, {s}")
        a(f"global_store_dword v{vtmp}, v{vtmp+1}, s[96:97] offset:{4*k}")
    a("s_waitcnt vmcnt(0)")
def sgprs(n):
    return 102 if STAMP else n

WS_F = 40*MB
F_A = 0
F_H = 8192
F_O = 16384
F_SIZE = 24576
SPIN_LIMIT = 1 << 20

def poll_global(a, tag, srd, voff, soff, vt, wide, cnt_s, hook=None):
    ld = (f"buffer_load_dwordx4 v[{vt}:{vt+3}], v{voff}, {srd}, {soff} offen sc1" if wide
          else f"buffer_load_dword v{vt}, v{voff}, {srd}, {soff} offen sc1")
    a(f"s_mov_b32 s{cnt_s}, {SPIN_LIMIT}")
    if hook:
        a(ld)
        a("s_waitcnt vmcnt(0)")
        for x in hook: a(x)
        a(f"s_branch {tag}_chk")
    a.label(f"{tag}_poll")
    a(ld)
    a("s_waitcnt vmcnt(0)")
    a.label(f"{tag}_chk")
    if wide:
        a(f"v_and_b32 v{vt}, v{vt}, v{vt+1}")
        a(f"v_and_b32 v{vt+2}, v{vt+2}, v{vt+3}")
        a(f"v_and_b32 v{vt}, v{vt}, v{vt+2}")
    a(f"v_cmp_ne_u32 vcc, 1, v{vt}")
    a(f"s_cbranch_vccz {tag}_ok")
    a("s_sleep 8")
    a(f"s_sub_u32 s{cnt_s}, s{cnt_s}, 1")
    a(f"s_cmp_lg_u32 s{cnt_s}, 0")
    a(f"s_cbranch_scc1 {tag}_poll")
    a.label(f"{tag}_ok")

def poll_lds(a, tag, vaddr, off, vt, wide, cnt_s):
    a(f"s_mov_b32 s{cnt_s}, {SPIN_LIMIT*8}")
    a.label(f"{tag}_poll")
    if wide:
        a(f"ds_read_b128 v[{vt}:{vt+3}], v{vaddr} offset:{off}")
        a("s_waitcnt lgkmcnt(0)")
        a(f"v_and_b32 v{vt}, v{vt}, v{vt+1}")
        a(f"v_and_b32 v{vt+2}, v{vt+2}, v{vt+3}")
        a(f"v_and_b32 v{vt}, v{vt}, v{vt+2}")
    else:
        a(f"ds_read_b32 v{vt}, v{vaddr} offset:{off}")
        a("s_waitcnt lgkmcnt(0)")
    a(f"v_cmp_ne_u32 vcc, 1, v{vt}")
    a(f"s_cbranch_vccz {tag}_ok")
    a("s_sleep 1")
    a(f"s_sub_u32 s{cnt_s}, s{cnt_s}, 1")
    a(f"s_cmp_lg_u32 s{cnt_s}, 0")
    a(f"s_cbranch_scc1 {tag}_poll")
    a.label(f"{tag}_ok")

def wg_signal(a, tag, lds_addr, nwaves, srd, soff, v0, v1, v2):
    a(f"v_mov_b32 v{v0}, {lds_addr}")
    a(f"v_mov_b32 v{v1}, 1")
    a("s_mov_b64 exec, 1")
    a(f"ds_add_rtn_u32 v{v2}, v{v0}, v{v1}")
    a(f"v_mov_b32 v{v0}, 0")
    a("s_waitcnt lgkmcnt(0)")
    a(f"v_cmp_eq_u32 vcc, {nwaves-1}, v{v2}")
    a(f"s_cbranch_vccz {tag}_nosig")
    a(f"buffer_store_dword v{v1}, v{v0}, {srd}, {soff} offen sc1")
    a.label(f"{tag}_nosig")
    a("s_mov_b64 exec, -1")
```

```python
import struct

class Asm:
    def __init__(self):
        self.lines = []
    def __call__(self, s):
        for l in s.split('\n'):
            l = l.strip()
            if l: self.lines.append("  " + l)
    def label(self, l):
        self.lines.append(l + ":")
    def raw(self, l):
        self.lines.append(l)
    def text(self):
        return "\n".join(self.lines)

def f2u(x):
    return struct.unpack('<I', struct.pack('<f', x))[0]
def fhex(x):
    return "0x%08x" % f2u(x)

def vr(a, n=1):
    return f"v{a}" if n == 1 else f"v[{a}:{a+n-1}]"
def ar(a, n=1):
    return f"a{a}" if n == 1 else f"a[{a}:{a+n-1}]"
def sr(a, n=1):
    return f"s{a}" if n == 1 else f"s[{a}:{a+n-1}]"

MB = 1 << 20
WS_XN = 0
WS_Q  = 4*MB
WS_KV = 8*MB
WS_H  = 16*MB
WS_O  = 32*MB
WS_G  = 36*MB
WS_SIZE = 256*MB

def kernel_header(a, name):
    a.raw(f".globl {name}")
    a.raw(".p2align 8")
    a.raw(f".type {name},@function")
    a.label(name)

def kernel_desc(name, vgpr, sgpr, accum=None):
    if accum is None: accum = (vgpr + 3)//4*4
    return f""".p2align 6
.amdhsa_kernel {name}
  .amdhsa_next_free_vgpr {vgpr}
  .amdhsa_next_free_sgpr {sgpr}
  .amdhsa_accum_offset {accum}
  .amdhsa_group_segment_fixed_size 0
  .amdhsa_kernarg_size 80
  .amdhsa_user_sgpr_count 2
  .amdhsa_user_sgpr_kernarg_segment_ptr 1
  .amdhsa_system_sgpr_workgroup_id_x 1
  .amdhsa_float_denorm_mode_32 3
  .amdhsa_float_denorm_mode_16_64 3
.end_amdhsa_kernel"""

def make_srd(a, d, base, off_imm=None, off_sreg=None, size=None, size_sreg=None):
    if off_imm is None and off_sreg is None:
        if d != base:
            a(f"s_mov_b32 s{d}, s{base}")
            a(f"s_mov_b32 s{d+1}, s{base+1}")
    else:
        o = f"s{off_sreg}" if off_sreg is not None else str(off_imm)
        a(f"s_add_u32 s{d}, s{base}, {o}")
        a(f"s_addc_u32 s{d+1}, s{base+1}, 0")
    if size_sreg is not None: a(f"s_mov_b32 s{d+2}, s{size_sreg}")
    else: a(f"s_mov_b32 s{d+2}, {size}")
    a(f"s_mov_b32 s{d+3}, 0x20000")

HEADER = """; Kernarg layout for this problem (80 bytes, ptrs only, base s[0:1]):
"""

def assemble_file(kernels):
    out = [HEADER.rstrip()]
    for (name, grid, block, lds, text, desc) in kernels:
        out.append(f"; @launch kernel={name} grid=({grid},1,1) block=({block},1,1) lds={lds}")
    out.append('.amdgcn_target "amdgcn-amd-amdhsa--gfx950"')
    out.append('.text')
    seen = set()
    for (name, grid, block, lds, text, desc) in kernels:
        if name in seen: continue
        seen.add(name); out.append(text)
    out.append('.section .rodata,"a"')
    seen = set()
    for (name, grid, block, lds, text, desc) in kernels:
        if name in seen: continue
        seen.add(name); out.append(desc)
    return "\n".join(out) + "\n"

import os
STAMP = os.environ.get("STAMP", "0") == "1"
WS_STAMP = 48*MB
def stamp(a, idx):
    if not STAMP: return
    a(f"s_memtime s[{64+4*idx}:{65+4*idx}]")
    a(f"s_memrealtime s[{66+4*idx}:{67+4*idx}]")
def stamp_flush(a, kidx, wave_sreg, nst, vtmp=1):
    if not STAMP: return
    if os.environ.get("AMP"):
        i0, i1 = [int(x) for x in os.environ["AMP"].split(",")]; uid = len(a.lines)
        a("s_load_dwordx2 s[96:97], s[0:1], 72")
        a("s_waitcnt lgkmcnt(0)")
        a("s_cmp_lg_u32 s2, 100")
        a(f"s_cbranch_scc1 amp_skip{uid}")
        a(f"s_add_u32 s96, s96, {WS_STAMP}")
        a("s_addc_u32 s97, s97, 0")
        if kidx == 0:
            a(f"v_mov_b32 v{vtmp}, 0"); a(f"v_mov_b32 v{vtmp+1}, s66")
            a(f"global_store_dword v{vtmp}, v{vtmp+1}, s[96:97]")
        elif nst == 8:
            a(f"s_cmp_lg_u32 s{wave_sreg}, 4")
            a(f"s_cbranch_scc1 amp_skip{uid}")
            a("s_load_dword s98, s[96:97], 0")
            a("s_waitcnt lgkmcnt(0)")
            A = "s98" if i0 < 0 else f"s{66+4*i0}"
            if os.environ.get("CYC"):
                a(f"s_sub_u32 s98, s{64+4*i1}, s{64+4*i0}")
                a("s_min_u32 s98, s98, 200000")
                a("s_lshr_b32 s98, s98, 2")
            else:
                a(f"s_sub_u32 s98, s{66+4*i1}, {A}")
                a("s_min_u32 s98, s98, 20000")
                a("s_lshl_b32 s98, s98, 2")
            a.label(f"amp_spin{uid}")
            a("s_memrealtime s[100:101]")
            a("s_waitcnt lgkmcnt(0)")
            a(f"s_sub_u32 s99, s100, s{66+4*7}")
            a("s_cmp_lt_u32 s99, s98")
            a(f"s_cbranch_scc1 amp_spin{uid}")
        a.label(f"amp_skip{uid}")
        return
    if os.environ.get("DBG"):
        wg = int(os.environ["DBG"]); uid = len(a.lines)
        a("s_load_dwordx2 s[96:97], s[0:1], 64")
        a("s_waitcnt lgkmcnt(0)")
        a(f"s_cmp_lg_u32 s2, {wg}")
        a(f"s_cbranch_scc1 dbg_skip{uid}")
        a(f"s_and_b32 s98, s{wave_sreg}, 3")
        a("s_cmp_lg_u32 s98, 0")
        a(f"s_cbranch_scc1 dbg_skip{uid}")
        a(f"s_add_u32 s96, s96, {512*(1-kidx)}")
        a("s_addc_u32 s97, s97, 0")
        if kidx == 0: idx = [(0, 0), (1, 1)]
        elif nst == 7: idx = [(2+i, i) for i in range(7)]
        else: idx = [(9+i, i+1) for i in range(7)]
        a(f"v_mov_b32 v{vtmp}, 0")
        for k, i in idx:
            a(f"v_mov_b32 v{vtmp+1}, s{66+4*i}")
            a(f"global_store_dword v{vtmp}, v{vtmp+1}, s[96:97] offset:{4*k}")
        a("s_waitcnt vmcnt(0)")
        a.label(f"dbg_skip{uid}")
        return
    a("s_load_dwordx2 s[96:97], s[0:1], 72")
    a("s_waitcnt lgkmcnt(0)")
    a(f"s_add_u32 s98, s2, {kidx*256}")
    a("s_lshl_b32 s98, s98, 4")
    a(f"s_add_u32 s98, s98, s{wave_sreg}")
    a("s_lshl_b32 s98, s98, 7")
    a(f"s_add_u32 s98, s98, {WS_STAMP}")
    a("s_add_u32 s96, s96, s98")
    a("s_addc_u32 s97, s97, 0")
    a(f"v_mov_b32 v{vtmp}, 0")
    vals = [str(nst), "0"]
    for i in range(nst): vals += [f"s{64+4*i}", f"s{66+4*i}"]
    for k, s in enumerate(vals):
        a(f"v_mov_b32 v{vtmp+1}, {s}")
        a(f"global_store_dword v{vtmp}, v{vtmp+1}, s[96:97] offset:{4*k}")
    a("s_waitcnt vmcnt(0)")
def sgprs(n):
    return 102 if STAMP else n

WS_F = 40*MB
F_A = 0
F_H = 8192
F_O = 16384
F_SIZE = 24576
SPIN_LIMIT = 1 << 20

def poll_global(a, tag, srd, voff, soff, vt, wide, cnt_s, hook=None):
    ld = (f"buffer_load_dwordx4 v[{vt}:{vt+3}], v{voff}, {srd}, {soff} offen sc1" if wide
          else f"buffer_load_dword v{vt}, v{voff}, {srd}, {soff} offen sc1")
    a(f"s_mov_b32 s{cnt_s}, {SPIN_LIMIT}")
    if hook:
        a(ld)
        a("s_waitcnt vmcnt(0)")
        for x in hook: a(x)
        a(f"s_branch {tag}_chk")
    a.label(f"{tag}_poll")
    a(ld)
    a("s_waitcnt vmcnt(0)")
    a.label(f"{tag}_chk")
    if wide:
        a(f"v_and_b32 v{vt}, v{vt}, v{vt+1}")
        a(f"v_and_b32 v{vt+2}, v{vt+2}, v{vt+3}")
        a(f"v_and_b32 v{vt}, v{vt}, v{vt+2}")
    a(f"v_cmp_ne_u32 vcc, 1, v{vt}")
    a(f"s_cbranch_vccz {tag}_ok")
    a("s_sleep 8")
    a(f"s_sub_u32 s{cnt_s}, s{cnt_s}, 1")
    a(f"s_cmp_lg_u32 s{cnt_s}, 0")
    a(f"s_cbranch_scc1 {tag}_poll")
    a.label(f"{tag}_ok")

def poll_lds(a, tag, vaddr, off, vt, wide, cnt_s):
    a(f"s_mov_b32 s{cnt_s}, {SPIN_LIMIT*8}")
    a.label(f"{tag}_poll")
    if wide:
        a(f"ds_read_b128 v[{vt}:{vt+3}], v{vaddr} offset:{off}")
        a("s_waitcnt lgkmcnt(0)")
        a(f"v_and_b32 v{vt}, v{vt}, v{vt+1}")
        a(f"v_and_b32 v{vt+2}, v{vt+2}, v{vt+3}")
        a(f"v_and_b32 v{vt}, v{vt}, v{vt+2}")
    else:
        a(f"ds_read_b32 v{vt}, v{vaddr} offset:{off}")
        a("s_waitcnt lgkmcnt(0)")
    a(f"v_cmp_ne_u32 vcc, 1, v{vt}")
    a(f"s_cbranch_vccz {tag}_ok")
    a("s_sleep 1")
    a(f"s_sub_u32 s{cnt_s}, s{cnt_s}, 1")
    a(f"s_cmp_lg_u32 s{cnt_s}, 0")
    a(f"s_cbranch_scc1 {tag}_poll")
    a.label(f"{tag}_ok")

def wg_signal(a, tag, lds_addr, nwaves, srd, soff, v0, v1, v2):
    a(f"v_mov_b32 v{v0}, {lds_addr}")
    a(f"v_mov_b32 v{v1}, 1")
    a("s_mov_b64 exec, 1")
    a(f"ds_add_rtn_u32 v{v2}, v{v0}, v{v1}")
    a(f"v_mov_b32 v{v0}, 0")
    a("s_waitcnt lgkmcnt(0)")
    a(f"v_cmp_eq_u32 vcc, {nwaves-1}, v{v2}")
    a(f"s_cbranch_vccz {tag}_nosig")
    a(f"buffer_store_dword v{v1}, v{v0}, {srd}, {soff} offen sc1")
    a.label(f"{tag}_nosig")
    a("s_mov_b64 exec, -1")
```

```python
import struct

class Asm:
    def __init__(self):
        self.lines = []
    def __call__(self, s):
        for l in s.split('\n'):
            l = l.strip()
            if l: self.lines.append("  " + l)
    def label(self, l):
        self.lines.append(l + ":")
    def raw(self, l):
        self.lines.append(l)
    def text(self):
        return "\n".join(self.lines)

def f2u(x):
    return struct.unpack('<I', struct.pack('<f', x))[0]
def fhex(x):
    return "0x%08x" % f2u(x)

def vr(a, n=1):
    return f"v{a}" if n == 1 else f"v[{a}:{a+n-1}]"
def ar(a, n=1):
    return f"a{a}" if n == 1 else f"a[{a}:{a+n-1}]"
def sr(a, n=1):
    return f"s{a}" if n == 1 else f"s[{a}:{a+n-1}]"

MB = 1 << 20
WS_XN = 0
WS_Q  = 4*MB
WS_KV = 8*MB
WS_H  = 16*MB
WS_O  = 32*MB
WS_G  = 36*MB
WS_SIZE = 256*MB

def kernel_header(a, name):
    a.raw(f".globl {name}")
    a.raw(".p2align 8")
    a.raw(f".type {name},@function")
    a.label(name)

def kernel_desc(name, vgpr, sgpr, accum=None):
    if accum is None: accum = (vgpr + 3)//4*4
    return f""".p2align 6
.amdhsa_kernel {name}
  .amdhsa_next_free_vgpr {vgpr}
  .amdhsa_next_free_sgpr {sgpr}
  .amdhsa_accum_offset {accum}
  .amdhsa_group_segment_fixed_size 0
  .amdhsa_kernarg_size 80
  .amdhsa_user_sgpr_count 2
  .amdhsa_user_sgpr_kernarg_segment_ptr 1
  .amdhsa_system_sgpr_workgroup_id_x 1
  .amdhsa_float_denorm_mode_32 3
  .amdhsa_float_denorm_mode_16_64 3
.end_amdhsa_kernel"""

def make_srd(a, d, base, off_imm=None, off_sreg=None, size=None, size_sreg=None):
    if off_imm is None and off_sreg is None:
        if d != base:
            a(f"s_mov_b32 s{d}, s{base}")
            a(f"s_mov_b32 s{d+1}, s{base+1}")
    else:
        o = f"s{off_sreg}" if off_sreg is not None else str(off_imm)
        a(f"s_add_u32 s{d}, s{base}, {o}")
        a(f"s_addc_u32 s{d+1}, s{base+1}, 0")
    if size_sreg is not None: a(f"s_mov_b32 s{d+2}, s{size_sreg}")
    else: a(f"s_mov_b32 s{d+2}, {size}")
    a(f"s_mov_b32 s{d+3}, 0x20000")

HEADER = """; Kernarg layout for this problem (80 bytes, ptrs only, base s[0:1]):
"""

def assemble_file(kernels):
    out = [HEADER.rstrip()]
    for (name, grid, block, lds, text, desc) in kernels:
        out.append(f"; @launch kernel={name} grid=({grid},1,1) block=({block},1,1) lds={lds}")
    out.append('.amdgcn_target "amdgcn-amd-amdhsa--gfx950"')
    out.append('.text')
    seen = set()
    for (name, grid, block, lds, text, desc) in kernels:
        if name in seen: continue
        seen.add(name); out.append(text)
    out.append('.section .rodata,"a"')
    seen = set()
    for (name, grid, block, lds, text, desc) in kernels:
        if name in seen: continue
        seen.add(name); out.append(desc)
    return "\n".join(out) + "\n"

import os
STAMP = os.environ.get("STAMP", "0") == "1"
WS_STAMP = 48*MB
STAMP_OFF = set()
def stamp(a, idx):
    if not STAMP or idx in STAMP_OFF: return
    a(f"s_memtime s[{64+4*idx}:{65+4*idx}]")
    a(f"s_memrealtime s[{66+4*idx}:{67+4*idx}]")
def stamp_flush(a, kidx, wave_sreg, nst, vtmp=1):
    if not STAMP: return
    if os.environ.get("AMP"):
        i0, i1 = [int(x) for x in os.environ["AMP"].split(",")]; uid = len(a.lines)
        a("s_load_dwordx2 s[96:97], s[0:1], 72")
        a("s_waitcnt lgkmcnt(0)")
        a("s_cmp_lg_u32 s2, 100")
        a(f"s_cbranch_scc1 amp_skip{uid}")
        a(f"s_add_u32 s96, s96, {WS_STAMP}")
        a("s_addc_u32 s97, s97, 0")
        if kidx == 0:
            a(f"v_mov_b32 v{vtmp}, 0"); a(f"v_mov_b32 v{vtmp+1}, s66")
            a(f"global_store_dword v{vtmp}, v{vtmp+1}, s[96:97]")
        elif nst == 8:
            a(f"s_cmp_lg_u32 s{wave_sreg}, 4")
            a(f"s_cbranch_scc1 amp_skip{uid}")
            a("s_load_dword s98, s[96:97], 0")
            a("s_waitcnt lgkmcnt(0)")
            A = "s98" if i0 < 0 else f"s{66+4*i0}"
            if os.environ.get("CYC"):
                a(f"s_sub_u32 s98, s{64+4*i1}, s{64+4*i0}")
                a("s_min_u32 s98, s98, 200000")
                a("s_lshr_b32 s98, s98, 2")
            else:
                a(f"s_sub_u32 s98, s{66+4*i1}, {A}")
                a("s_min_u32 s98, s98, 20000")
                a("s_lshl_b32 s98, s98, 2")
            a.label(f"amp_spin{uid}")
            a("s_memrealtime s[100:101]")
            a("s_waitcnt lgkmcnt(0)")
            a(f"s_sub_u32 s99, s100, s{66+4*7}")
            a("s_cmp_lt_u32 s99, s98")
            a(f"s_cbranch_scc1 amp_spin{uid}")
        a.label(f"amp_skip{uid}")
        return
    if os.environ.get("DBG"):
        wg = int(os.environ["DBG"]); uid = len(a.lines)
        a("s_load_dwordx2 s[96:97], s[0:1], 64")
        a("s_waitcnt lgkmcnt(0)")
        a(f"s_cmp_lg_u32 s2, {wg}")
        a(f"s_cbranch_scc1 dbg_skip{uid}")
        a(f"s_and_b32 s98, s{wave_sreg}, 3")
        a("s_cmp_lg_u32 s98, 0")
        a(f"s_cbranch_scc1 dbg_skip{uid}")
        a(f"s_add_u32 s96, s96, {512*(1-kidx)}")
        a("s_addc_u32 s97, s97, 0")
        if kidx == 0: idx = [(0, 0), (1, 1)]
        elif nst == 7: idx = [(2+i, i) for i in range(7)]
        else: idx = [(9+i, i+1) for i in range(7)]
        a(f"v_mov_b32 v{vtmp}, 0")
        for k, i in idx:
            a(f"v_mov_b32 v{vtmp+1}, s{66+4*i}")
            a(f"global_store_dword v{vtmp}, v{vtmp+1}, s[96:97] offset:{4*k}")
        a("s_waitcnt vmcnt(0)")
        a.label(f"dbg_skip{uid}")
        return
    a("s_load_dwordx2 s[96:97], s[0:1], 72")
    a("s_waitcnt lgkmcnt(0)")
    a(f"s_add_u32 s98, s2, {kidx*256}")
    a("s_lshl_b32 s98, s98, 4")
    a(f"s_add_u32 s98, s98, s{wave_sreg}")
    a("s_lshl_b32 s98, s98, 7")
    a(f"s_add_u32 s98, s98, {WS_STAMP}")
    a("s_add_u32 s96, s96, s98")
    a("s_addc_u32 s97, s97, 0")
    a(f"v_mov_b32 v{vtmp}, 0")
    vals = [str(nst), "0"]
    for i in range(nst): vals += [f"s{64+4*i}", f"s{66+4*i}"]
    for k, s in enumerate(vals):
        a(f"v_mov_b32 v{vtmp+1}, {s}")
        a(f"global_store_dword v{vtmp}, v{vtmp+1}, s[96:97] offset:{4*k}")
    a("s_waitcnt vmcnt(0)")
def sgprs(n):
    return 102 if STAMP else n

WS_F = 40*MB
FSH = int(os.environ.get("FSH", "7"))
F_A = 0
F_A2 = F_A + (256 << FSH)
F_H = F_A2 + (64 << FSH)
F_O = F_H + (256 << FSH)
F_X = F_O + (1024 << FSH)
F_E = F_X + (256 << FSH)
F_SIZE = F_E + 128
FLAGV = ["1"]
SPIN_LIMIT = 1 << 20

def poll_global(a, tag, srd, voff, soff, vt, wide, cnt_s, hook=None):
    ld = (f"buffer_load_dwordx4 v[{vt}:{vt+3}], v{voff}, {srd}, {soff} offen sc1" if wide
          else f"buffer_load_dword v{vt}, v{voff}, {srd}, {soff} offen sc1")
    a(f"s_mov_b32 s{cnt_s}, {SPIN_LIMIT}")
    if hook:
        a(ld)
        a("s_waitcnt vmcnt(0)")
        for x in hook: a(x)
        a(f"s_branch {tag}_chk")
    a.label(f"{tag}_poll")
    a(ld)
    a("s_waitcnt vmcnt(0)")
    a.label(f"{tag}_chk")
    if wide:
        a(f"v_and_b32 v{vt}, v{vt}, v{vt+1}")
        a(f"v_and_b32 v{vt+2}, v{vt+2}, v{vt+3}")
        a(f"v_and_b32 v{vt}, v{vt}, v{vt+2}")
    a(f"v_cmp_ne_u32 vcc, {FLAGV[0]}, v{vt}")
    a(f"s_cbranch_vccz {tag}_ok")
    a("s_sleep 2")
    a(f"s_sub_u32 s{cnt_s}, s{cnt_s}, 1")
    a(f"s_cmp_lg_u32 s{cnt_s}, 0")
    a(f"s_cbranch_scc1 {tag}_poll")
    a.label(f"{tag}_ok")

def poll_lds(a, tag, vaddr, off, vt, wide, cnt_s):
    a(f"s_mov_b32 s{cnt_s}, {SPIN_LIMIT*8}")
    a.label(f"{tag}_poll")
    if wide:
        a(f"ds_read_b128 v[{vt}:{vt+3}], v{vaddr} offset:{off}")
        a("s_waitcnt lgkmcnt(0)")
        a(f"v_and_b32 v{vt}, v{vt}, v{vt+1}")
        a(f"v_and_b32 v{vt+2}, v{vt+2}, v{vt+3}")
        a(f"v_and_b32 v{vt}, v{vt}, v{vt+2}")
    else:
        a(f"ds_read_b32 v{vt}, v{vaddr} offset:{off}")
        a("s_waitcnt lgkmcnt(0)")
    a(f"v_cmp_ne_u32 vcc, 1, v{vt}")
    a(f"s_cbranch_vccz {tag}_ok")
    a("s_sleep 1")
    a(f"s_sub_u32 s{cnt_s}, s{cnt_s}, 1")
    a(f"s_cmp_lg_u32 s{cnt_s}, 0")
    a(f"s_cbranch_scc1 {tag}_poll")
    a.label(f"{tag}_ok")

def flag_store(a, srd, soffs, va, vb):
    a("s_mov_b32 exec_lo, -1")
    a("s_mov_b32 exec_hi, 0")
    a(f"v_lshlrev_b32 v{va}, 2, v0")
    a(f"v_mov_b32 v{vb}, {FLAGV[0]}")
    for so in (soffs if isinstance(soffs, list) else [soffs]):
        a(f"buffer_store_dword v{vb}, v{va}, {srd}, {so} offen sc1")
    a("s_mov_b64 exec, -1")

def wg_signal(a, tag, lds_addr, nwaves, srd, soff, v0, v1, v2):
    a(f"v_mov_b32 v{v0}, {lds_addr}")
    a(f"v_mov_b32 v{v1}, 1")
    a("s_mov_b64 exec, 1")
    a(f"ds_add_rtn_u32 v{v2}, v{v0}, v{v1}")
    a("s_waitcnt lgkmcnt(0)")
    a(f"v_cmp_eq_u32 vcc, {nwaves-1}, v{v2}")
    a(f"s_cbranch_vccz {tag}_nosig")
    flag_store(a, srd, soff, v0, v1)
    a.label(f"{tag}_nosig")
    a("s_mov_b64 exec, -1")
```

```python
import struct

class Asm:
    def __init__(self):
        self.lines = []
    def __call__(self, s):
        for l in s.split('\n'):
            l = l.strip()
            if l: self.lines.append("  " + l)
    def label(self, l):
        self.lines.append(l + ":")
    def raw(self, l):
        self.lines.append(l)
    def text(self):
        return "\n".join(self.lines)

def f2u(x):
    return struct.unpack('<I', struct.pack('<f', x))[0]
def fhex(x):
    return "0x%08x" % f2u(x)

def vr(a, n=1):
    return f"v{a}" if n == 1 else f"v[{a}:{a+n-1}]"
def ar(a, n=1):
    return f"a{a}" if n == 1 else f"a[{a}:{a+n-1}]"
def sr(a, n=1):
    return f"s{a}" if n == 1 else f"s[{a}:{a+n-1}]"

MB = 1 << 20
WS_XN = 0
WS_Q  = 4*MB
WS_KV = 8*MB
WS_H  = 16*MB
WS_O  = 32*MB
WS_G  = 36*MB
WS_SIZE = 256*MB

def kernel_header(a, name):
    a.raw(f".globl {name}")
    a.raw(".p2align 8")
    a.raw(f".type {name},@function")
    a.label(name)

def kernel_desc(name, vgpr, sgpr, accum=None):
    if accum is None: accum = (vgpr + 3)//4*4
    return f""".p2align 6
.amdhsa_kernel {name}
  .amdhsa_next_free_vgpr {vgpr}
  .amdhsa_next_free_sgpr {sgpr}
  .amdhsa_accum_offset {accum}
  .amdhsa_group_segment_fixed_size 0
  .amdhsa_kernarg_size 80
  .amdhsa_user_sgpr_count 2
  .amdhsa_user_sgpr_kernarg_segment_ptr 1
  .amdhsa_system_sgpr_workgroup_id_x 1
  .amdhsa_float_denorm_mode_32 3
  .amdhsa_float_denorm_mode_16_64 3
.end_amdhsa_kernel"""

def make_srd(a, d, base, off_imm=None, off_sreg=None, size=None, size_sreg=None):
    if off_imm is None and off_sreg is None:
        if d != base:
            a(f"s_mov_b32 s{d}, s{base}")
            a(f"s_mov_b32 s{d+1}, s{base+1}")
    else:
        o = f"s{off_sreg}" if off_sreg is not None else str(off_imm)
        a(f"s_add_u32 s{d}, s{base}, {o}")
        a(f"s_addc_u32 s{d+1}, s{base+1}, 0")
    if size_sreg is not None: a(f"s_mov_b32 s{d+2}, s{size_sreg}")
    else: a(f"s_mov_b32 s{d+2}, {size}")
    a(f"s_mov_b32 s{d+3}, 0x20000")

HEADER = """; Kernarg layout for this problem (80 bytes, ptrs only, base s[0:1]):
"""

def assemble_file(kernels):
    out = [HEADER.rstrip()]
    for (name, grid, block, lds, text, desc) in kernels:
        out.append(f"; @launch kernel={name} grid=({grid},1,1) block=({block},1,1) lds={lds}")
    out.append('.amdgcn_target "amdgcn-amd-amdhsa--gfx950"')
    out.append('.text')
    seen = set()
    for (name, grid, block, lds, text, desc) in kernels:
        if name in seen: continue
        seen.add(name); out.append(text)
    out.append('.section .rodata,"a"')
    seen = set()
    for (name, grid, block, lds, text, desc) in kernels:
        if name in seen: continue
        seen.add(name); out.append(desc)
    return "\n".join(out) + "\n"

import os
STAMP = os.environ.get("STAMP", "0") == "1"
WS_STAMP = 48*MB
STAMP_OFF = set()
def stamp(a, idx):
    if not STAMP or idx in STAMP_OFF: return
    a(f"s_memtime s[{64+4*idx}:{65+4*idx}]")
    a(f"s_memrealtime s[{66+4*idx}:{67+4*idx}]")
def stamp_flush(a, kidx, wave_sreg, nst, vtmp=1):
    if not STAMP: return
    if os.environ.get("AMP"):
        i0, i1 = [int(x) for x in os.environ["AMP"].split(",")]; uid = len(a.lines)
        a("s_load_dwordx2 s[96:97], s[0:1], 72")
        a("s_waitcnt lgkmcnt(0)")
        a("s_cmp_lg_u32 s2, 100")
        a(f"s_cbranch_scc1 amp_skip{uid}")
        a(f"s_add_u32 s96, s96, {WS_STAMP}")
        a("s_addc_u32 s97, s97, 0")
        if kidx == 0:
            a(f"v_mov_b32 v{vtmp}, 0"); a(f"v_mov_b32 v{vtmp+1}, s66")
            a(f"global_store_dword v{vtmp}, v{vtmp+1}, s[96:97]")
        elif nst == 8:
            a(f"s_cmp_lg_u32 s{wave_sreg}, 4")
            a(f"s_cbranch_scc1 amp_skip{uid}")
            a("s_load_dword s98, s[96:97], 0")
            a("s_waitcnt lgkmcnt(0)")
            A = "s98" if i0 < 0 else f"s{66+4*i0}"
            if os.environ.get("CYC"):
                a(f"s_sub_u32 s98, s{64+4*i1}, s{64+4*i0}")
                a("s_min_u32 s98, s98, 200000")
                a("s_lshr_b32 s98, s98, 2")
            else:
                a(f"s_sub_u32 s98, s{66+4*i1}, {A}")
                a("s_min_u32 s98, s98, 20000")
                a("s_lshl_b32 s98, s98, 2")
            a.label(f"amp_spin{uid}")
            a("s_memrealtime s[100:101]")
            a("s_waitcnt lgkmcnt(0)")
            a(f"s_sub_u32 s99, s100, s{66+4*7}")
            a("s_cmp_lt_u32 s99, s98")
            a(f"s_cbranch_scc1 amp_spin{uid}")
        a.label(f"amp_skip{uid}")
        return
    if os.environ.get("DBG"):
        wg = int(os.environ["DBG"]); uid = len(a.lines)
        a("s_load_dwordx2 s[96:97], s[0:1], 64")
        a("s_waitcnt lgkmcnt(0)")
        a(f"s_cmp_lg_u32 s2, {wg}")
        a(f"s_cbranch_scc1 dbg_skip{uid}")
        a(f"s_and_b32 s98, s{wave_sreg}, 3")
        a("s_cmp_lg_u32 s98, 0")
        a(f"s_cbranch_scc1 dbg_skip{uid}")
        a(f"s_add_u32 s96, s96, {512*(1-kidx)}")
        a("s_addc_u32 s97, s97, 0")
        if kidx == 0: idx = [(0, 0), (1, 1)]
        elif nst == 7: idx = [(2+i, i) for i in range(7)]
        else: idx = [(9+i, i+1) for i in range(7)]
        a(f"v_mov_b32 v{vtmp}, 0")
        for k, i in idx:
            a(f"v_mov_b32 v{vtmp+1}, s{66+4*i}")
            a(f"global_store_dword v{vtmp}, v{vtmp+1}, s[96:97] offset:{4*k}")
        a("s_waitcnt vmcnt(0)")
        a.label(f"dbg_skip{uid}")
        return
    a("s_load_dwordx2 s[96:97], s[0:1], 72")
    a("s_waitcnt lgkmcnt(0)")
    a(f"s_add_u32 s98, s2, {kidx*256}")
    a("s_lshl_b32 s98, s98, 4")
    a(f"s_add_u32 s98, s98, s{wave_sreg}")
    a("s_lshl_b32 s98, s98, 7")
    a(f"s_add_u32 s98, s98, {WS_STAMP}")
    a("s_add_u32 s96, s96, s98")
    a("s_addc_u32 s97, s97, 0")
    a(f"v_mov_b32 v{vtmp}, 0")
    vals = [str(nst), "0"]
    for i in range(nst): vals += [f"s{64+4*i}", f"s{66+4*i}"]
    for k, s in enumerate(vals):
        a(f"v_mov_b32 v{vtmp+1}, {s}")
        a(f"global_store_dword v{vtmp}, v{vtmp+1}, s[96:97] offset:{4*k}")
    a("s_waitcnt vmcnt(0)")
def sgprs(n):
    return 102 if STAMP else n

WS_F = 40*MB
FSH = int(os.environ.get("FSH", "7"))
F_A = 0
F_A2 = F_A + (256 << FSH)
F_H = F_A2 + (64 << FSH)
F_O = F_H + (256 << FSH)
F_X = F_O + (1024 << FSH)
F_E = F_X + (256 << FSH)
F_SIZE = F_E + 128
FLAGV = ["1"]
SPIN_LIMIT = 1 << 20

def poll_global(a, tag, srd, voff, soff, vt, wide, cnt_s, hook=None, sleep=2):
    ld = (f"buffer_load_dwordx4 v[{vt}:{vt+3}], v{voff}, {srd}, {soff} offen sc1" if wide
          else f"buffer_load_dword v{vt}, v{voff}, {srd}, {soff} offen sc1")
    a(f"s_mov_b32 s{cnt_s}, {SPIN_LIMIT}")
    if hook:
        a(ld)
        a("s_waitcnt vmcnt(0)")
        for x in hook: a(x)
        a(f"s_branch {tag}_chk")
    a.label(f"{tag}_poll")
    a(ld)
    a("s_waitcnt vmcnt(0)")
    a.label(f"{tag}_chk")
    if wide:
        a(f"v_and_b32 v{vt}, v{vt}, v{vt+1}")
        a(f"v_and_b32 v{vt+2}, v{vt+2}, v{vt+3}")
        a(f"v_and_b32 v{vt}, v{vt}, v{vt+2}")
    a(f"v_cmp_ne_u32 vcc, {FLAGV[0]}, v{vt}")
    a(f"s_cbranch_vccz {tag}_ok")
    a("s_mov_b64 exec, vcc")
    a(f"s_sleep {sleep}")
    a(f"s_sub_u32 s{cnt_s}, s{cnt_s}, 1")
    a(f"s_cmp_lg_u32 s{cnt_s}, 0")
    a(f"s_cbranch_scc1 {tag}_poll")
    a.label(f"{tag}_ok")
    a("s_mov_b64 exec, -1")

def poll_lds(a, tag, vaddr, off, vt, wide, cnt_s, sleep=1):
    a(f"s_mov_b32 s{cnt_s}, {SPIN_LIMIT*8}")
    a.label(f"{tag}_poll")
    if wide:
        a(f"ds_read_b128 v[{vt}:{vt+3}], v{vaddr} offset:{off}")
        a("s_waitcnt lgkmcnt(0)")
        a(f"v_and_b32 v{vt}, v{vt}, v{vt+1}")
        a(f"v_and_b32 v{vt+2}, v{vt+2}, v{vt+3}")
        a(f"v_and_b32 v{vt}, v{vt}, v{vt+2}")
    else:
        a(f"ds_read_b32 v{vt}, v{vaddr} offset:{off}")
        a("s_waitcnt lgkmcnt(0)")
    a(f"v_cmp_ne_u32 vcc, 1, v{vt}")
    a(f"s_cbranch_vccz {tag}_ok")
    a(f"s_sleep {sleep}")
    a(f"s_sub_u32 s{cnt_s}, s{cnt_s}, 1")
    a(f"s_cmp_lg_u32 s{cnt_s}, 0")
    a(f"s_cbranch_scc1 {tag}_poll")
    a.label(f"{tag}_ok")

def flag_store(a, srd, soffs, va, vb):
    a("s_mov_b32 exec_lo, -1")
    a("s_mov_b32 exec_hi, 0")
    a(f"v_lshlrev_b32 v{va}, 2, v0")
    a(f"v_mov_b32 v{vb}, {FLAGV[0]}")
    for so in (soffs if isinstance(soffs, list) else [soffs]):
        a(f"buffer_store_dword v{vb}, v{va}, {srd}, {so} offen sc1")
    a("s_mov_b64 exec, -1")

def wg_signal(a, tag, lds_addr, nwaves, srd, soff, v0, v1, v2):
    a(f"v_mov_b32 v{v0}, {lds_addr}")
    a(f"v_mov_b32 v{v1}, 1")
    a("s_mov_b64 exec, 1")
    a(f"ds_add_rtn_u32 v{v2}, v{v0}, v{v1}")
    a("s_waitcnt lgkmcnt(0)")
    a(f"v_cmp_eq_u32 vcc, {nwaves-1}, v{v2}")
    a(f"s_cbranch_vccz {tag}_nosig")
    flag_store(a, srd, soff, v0, v1)
    a.label(f"{tag}_nosig")
    a("s_mov_b64 exec, -1")
```

```python
import struct

class Asm:
    def __init__(self):
        self.lines = []
    def __call__(self, s):
        for l in s.split('\n'):
            l = l.strip()
            if l: self.lines.append("  " + l)
    def label(self, l):
        self.lines.append(l + ":")
    def raw(self, l):
        self.lines.append(l)
    def text(self):
        return "\n".join(self.lines)

def f2u(x):
    return struct.unpack('<I', struct.pack('<f', x))[0]
def fhex(x):
    return "0x%08x" % f2u(x)

def vr(a, n=1):
    return f"v{a}" if n == 1 else f"v[{a}:{a+n-1}]"
def ar(a, n=1):
    return f"a{a}" if n == 1 else f"a[{a}:{a+n-1}]"
def sr(a, n=1):
    return f"s{a}" if n == 1 else f"s[{a}:{a+n-1}]"

MB = 1 << 20
WS_XN = 0
WS_Q  = 4*MB
WS_KV = 8*MB
WS_H  = 16*MB
WS_O  = 32*MB
WS_G  = 36*MB
WS_WD = 52*MB
WS_WO = 60*MB
WS_SIZE = 256*MB

def kernel_header(a, name):
    a.raw(f".globl {name}")
    a.raw(".p2align 8")
    a.raw(f".type {name},@function")
    a.label(name)

def kernel_desc(name, vgpr, sgpr, accum=None):
    if accum is None: accum = (vgpr + 3)//4*4
    return f""".p2align 6
.amdhsa_kernel {name}
  .amdhsa_next_free_vgpr {vgpr}
  .amdhsa_next_free_sgpr {sgpr}
  .amdhsa_accum_offset {accum}
  .amdhsa_group_segment_fixed_size 0
  .amdhsa_kernarg_size 80
  .amdhsa_user_sgpr_count 2
  .amdhsa_user_sgpr_kernarg_segment_ptr 1
  .amdhsa_system_sgpr_workgroup_id_x 1
  .amdhsa_float_denorm_mode_32 3
  .amdhsa_float_denorm_mode_16_64 3
.end_amdhsa_kernel"""

def make_srd(a, d, base, off_imm=None, off_sreg=None, size=None, size_sreg=None):
    if off_imm is None and off_sreg is None:
        if d != base:
            a(f"s_mov_b32 s{d}, s{base}")
            a(f"s_mov_b32 s{d+1}, s{base+1}")
    else:
        o = f"s{off_sreg}" if off_sreg is not None else str(off_imm)
        a(f"s_add_u32 s{d}, s{base}, {o}")
        a(f"s_addc_u32 s{d+1}, s{base+1}, 0")
    if size_sreg is not None: a(f"s_mov_b32 s{d+2}, s{size_sreg}")
    else: a(f"s_mov_b32 s{d+2}, {size}")
    a(f"s_mov_b32 s{d+3}, 0x20000")

HEADER = """; Kernarg layout for this problem (80 bytes, ptrs only, base s[0:1]):
"""

def assemble_file(kernels):
    out = [HEADER.rstrip()]
    for (name, grid, block, lds, text, desc) in kernels:
        out.append(f"; @launch kernel={name} grid=({grid},1,1) block=({block},1,1) lds={lds}")
    out.append('.amdgcn_target "amdgcn-amd-amdhsa--gfx950"')
    out.append('.text')
    seen = set()
    for (name, grid, block, lds, text, desc) in kernels:
        if name in seen: continue
        seen.add(name); out.append(text)
    out.append('.section .rodata,"a"')
    seen = set()
    for (name, grid, block, lds, text, desc) in kernels:
        if name in seen: continue
        seen.add(name); out.append(desc)
    return "\n".join(out) + "\n"

import os
STAMP = os.environ.get("STAMP", "0") == "1"
WS_STAMP = 48*MB
STAMP_OFF = set()
def stamp(a, idx):
    if not STAMP or idx in STAMP_OFF: return
    a(f"s_memtime s[{64+4*idx}:{65+4*idx}]")
    a(f"s_memrealtime s[{66+4*idx}:{67+4*idx}]")
def stamp_flush(a, kidx, wave_sreg, nst, vtmp=1):
    if not STAMP: return
    if os.environ.get("AMP"):
        i0, i1 = [int(x) for x in os.environ["AMP"].split(",")]; uid = len(a.lines)
        a("s_load_dwordx2 s[96:97], s[0:1], 72")
        a("s_waitcnt lgkmcnt(0)")
        a("s_cmp_lg_u32 s2, 100")
        a(f"s_cbranch_scc1 amp_skip{uid}")
        a(f"s_add_u32 s96, s96, {WS_STAMP}")
        a("s_addc_u32 s97, s97, 0")
        if kidx == 0:
            a(f"v_mov_b32 v{vtmp}, 0"); a(f"v_mov_b32 v{vtmp+1}, s66")
            a(f"global_store_dword v{vtmp}, v{vtmp+1}, s[96:97]")
        elif nst == 8:
            a(f"s_cmp_lg_u32 s{wave_sreg}, 4")
            a(f"s_cbranch_scc1 amp_skip{uid}")
            a("s_load_dword s98, s[96:97], 0")
            a("s_waitcnt lgkmcnt(0)")
            A = "s98" if i0 < 0 else f"s{66+4*i0}"
            if os.environ.get("CYC"):
                a(f"s_sub_u32 s98, s{64+4*i1}, s{64+4*i0}")
                a("s_min_u32 s98, s98, 200000")
                a("s_lshr_b32 s98, s98, 2")
            else:
                a(f"s_sub_u32 s98, s{66+4*i1}, {A}")
                a("s_min_u32 s98, s98, 20000")
                a("s_lshl_b32 s98, s98, 2")
            a.label(f"amp_spin{uid}")
            a("s_memrealtime s[100:101]")
            a("s_waitcnt lgkmcnt(0)")
            a(f"s_sub_u32 s99, s100, s{66+4*7}")
            a("s_cmp_lt_u32 s99, s98")
            a(f"s_cbranch_scc1 amp_spin{uid}")
        a.label(f"amp_skip{uid}")
        return
    if os.environ.get("DBG"):
        wg = int(os.environ["DBG"]); uid = len(a.lines)
        a("s_load_dwordx2 s[96:97], s[0:1], 64")
        a("s_waitcnt lgkmcnt(0)")
        a(f"s_cmp_lg_u32 s2, {wg}")
        a(f"s_cbranch_scc1 dbg_skip{uid}")
        a(f"s_and_b32 s98, s{wave_sreg}, 3")
        a("s_cmp_lg_u32 s98, 0")
        a(f"s_cbranch_scc1 dbg_skip{uid}")
        a(f"s_add_u32 s96, s96, {512*(1-kidx)}")
        a("s_addc_u32 s97, s97, 0")
        if kidx == 0: idx = [(0, 0), (1, 1)]
        elif nst == 7: idx = [(2+i, i) for i in range(7)]
        else: idx = [(9+i, i+1) for i in range(7)]
        a(f"v_mov_b32 v{vtmp}, 0")
        for k, i in idx:
            a(f"v_mov_b32 v{vtmp+1}, s{66+4*i}")
            a(f"global_store_dword v{vtmp}, v{vtmp+1}, s[96:97] offset:{4*k}")
        a("s_waitcnt vmcnt(0)")
        a.label(f"dbg_skip{uid}")
        return
    a("s_load_dwordx2 s[96:97], s[0:1], 72")
    a("s_waitcnt lgkmcnt(0)")
    a(f"s_add_u32 s98, s2, {kidx*256}")
    a("s_lshl_b32 s98, s98, 4")
    a(f"s_add_u32 s98, s98, s{wave_sreg}")
    a("s_lshl_b32 s98, s98, 7")
    a(f"s_add_u32 s98, s98, {WS_STAMP}")
    a("s_add_u32 s96, s96, s98")
    a("s_addc_u32 s97, s97, 0")
    a(f"v_mov_b32 v{vtmp}, 0")
    vals = [str(nst), "0"]
    for i in range(nst): vals += [f"s{64+4*i}", f"s{66+4*i}"]
    for k, s in enumerate(vals):
        a(f"v_mov_b32 v{vtmp+1}, {s}")
        a(f"global_store_dword v{vtmp}, v{vtmp+1}, s[96:97] offset:{4*k}")
    a("s_waitcnt vmcnt(0)")
def sgprs(n):
    return 102 if STAMP else n

WS_F = 40*MB
FSH = int(os.environ.get("FSH", "7"))
F_A = 0
F_A2 = F_A + (256 << FSH)
F_H = F_A2 + (64 << FSH)
F_O = F_H + (256 << FSH)
F_X = F_O + (1024 << FSH)
F_S = F_X + (256 << FSH)
F_E = F_S + 256*128
F_SIZE = F_E + 128
FLAGV = ["1"]
SPIN_LIMIT = 1 << 20

def poll_global(a, tag, srd, voff, soff, vt, wide, cnt_s, hook=None, sleep=2):
    ld = (f"buffer_load_dwordx4 v[{vt}:{vt+3}], v{voff}, {srd}, {soff} offen sc1" if wide
          else f"buffer_load_dword v{vt}, v{voff}, {srd}, {soff} offen sc1")
    a(f"s_mov_b32 s{cnt_s}, {SPIN_LIMIT}")
    if hook:
        a(ld)
        a("s_waitcnt vmcnt(0)")
        for x in hook: a(x)
        a(f"s_branch {tag}_chk")
    a.label(f"{tag}_poll")
    a(ld)
    a("s_waitcnt vmcnt(0)")
    a.label(f"{tag}_chk")
    if wide:
        a(f"v_and_b32 v{vt}, v{vt}, v{vt+1}")
        a(f"v_and_b32 v{vt+2}, v{vt+2}, v{vt+3}")
        a(f"v_and_b32 v{vt}, v{vt}, v{vt+2}")
    a(f"v_cmp_ne_u32 vcc, {FLAGV[0]}, v{vt}")
    a(f"s_cbranch_vccz {tag}_ok")
    a("s_mov_b64 exec, vcc")
    a(f"s_sleep {sleep}")
    a(f"s_sub_u32 s{cnt_s}, s{cnt_s}, 1")
    a(f"s_cmp_lg_u32 s{cnt_s}, 0")
    a(f"s_cbranch_scc1 {tag}_poll")
    a.label(f"{tag}_ok")
    a("s_mov_b64 exec, -1")

def poll_lds(a, tag, vaddr, off, vt, wide, cnt_s, sleep=1):
    a(f"s_mov_b32 s{cnt_s}, {SPIN_LIMIT*8}")
    a.label(f"{tag}_poll")
    if wide:
        a(f"ds_read_b128 v[{vt}:{vt+3}], v{vaddr} offset:{off}")
        a("s_waitcnt lgkmcnt(0)")
        a(f"v_and_b32 v{vt}, v{vt}, v{vt+1}")
        a(f"v_and_b32 v{vt+2}, v{vt+2}, v{vt+3}")
        a(f"v_and_b32 v{vt}, v{vt}, v{vt+2}")
    else:
        a(f"ds_read_b32 v{vt}, v{vaddr} offset:{off}")
        a("s_waitcnt lgkmcnt(0)")
    a(f"v_cmp_ne_u32 vcc, 1, v{vt}")
    a(f"s_cbranch_vccz {tag}_ok")
    a(f"s_sleep {sleep}")
    a(f"s_sub_u32 s{cnt_s}, s{cnt_s}, 1")
    a(f"s_cmp_lg_u32 s{cnt_s}, 0")
    a(f"s_cbranch_scc1 {tag}_poll")
    a.label(f"{tag}_ok")

def flag_store(a, srd, soffs, va, vb):
    a("s_mov_b32 exec_lo, -1")
    a("s_mov_b32 exec_hi, 0")
    a(f"v_lshlrev_b32 v{va}, 2, v0")
    a(f"v_mov_b32 v{vb}, {FLAGV[0]}")
    for so in (soffs if isinstance(soffs, list) else [soffs]):
        a(f"buffer_store_dword v{vb}, v{va}, {srd}, {so} offen sc1")
    a("s_mov_b64 exec, -1")

def wg_signal(a, tag, lds_addr, nwaves, srd, soff, v0, v1, v2):
    a(f"v_mov_b32 v{v0}, {lds_addr}")
    a(f"v_mov_b32 v{v1}, 1")
    a("s_mov_b64 exec, 1")
    a(f"ds_add_rtn_u32 v{v2}, v{v0}, v{v1}")
    a("s_waitcnt lgkmcnt(0)")
    a(f"v_cmp_eq_u32 vcc, {nwaves-1}, v{v2}")
    a(f"s_cbranch_vccz {tag}_nosig")
    flag_store(a, srd, soff, v0, v1)
    a.label(f"{tag}_nosig")
    a("s_mov_b64 exec, -1")
```

```python
import re, sys

REG = re.compile(r'^(-|abs\(|\|)?([vas])(\d+)\)?\|?$')
RNG = re.compile(r'^(-|abs\(|\|)?([vas])\[(\d+):(\d+)\]\)?\|?$')

def regs_of(tok):
    tok = tok.strip()
    m = REG.match(tok)
    if m: return {(m.group(2), int(m.group(3)))}
    m = RNG.match(tok)
    if m: return {(m.group(2), i) for i in range(int(m.group(3)), int(m.group(4)) + 1)}
    if tok == 'vcc': return {('s', 'vcc')}
    if tok in ('vcc_lo', 'vcc_hi'): return {('s', 'vcc')}
    if tok == 'exec': return {('s', 'exec')}
    if tok == 'm0': return {('s', 'm0')}
    return set()

TRANS = ('v_exp_f32', 'v_log_f32', 'v_rcp_f32', 'v_rsq_f32', 'v_sqrt_f32', 'v_sin_f32', 'v_cos_f32', 'v_rcp_iflag_f32')

class I:
    pass

def parse(text):
    ins = []; labels = {}
    for ln, raw in enumerate(text.split('\n'), 1):
        s = raw.split(';')[0].split('//')[0].strip()
        if not s: continue
        if s.startswith('.') and not s.endswith(':'):
            continue
        m = re.match(r'^([\w.$]+):$', s)
        if m:
            labels[m.group(1)] = len(ins); continue
        parts = s.split(None, 1)
        op = parts[0]
        for suf in ('_e32', '_e64', '_dpp', '_sdwa'):
            if op.endswith(suf): op = op[:-len(suf)]
        rest = parts[1] if len(parts) > 1 else ''
        ops = [x.strip() for x in rest.split(',')] if rest else []
        mods = ''
        if ops:
            l = ops[-1].split(None, 1)
            if l:
                ops[-1] = l[0]
                mods = l[1] if len(l) > 1 else ''
        i = I(); i.op = op; i.ops = ops; i.mods = mods; i.ln = ln; i.raw = raw.strip()
        classify(i)
        ins.append(i)
    return ins, labels

def classify(i):
    op = i.op; o = i.ops
    R = lambda k: regs_of(o[k]) if k < len(o) else set()
    i.w = set(); i.r = set(); i.kind = 'other'; i.srcA = i.srcB = i.srcC = set(); i.passes = 0
    i.ws = 1
    i.dpp = ('row_' in i.mods or 'quad_perm' in i.mods or 'wave_' in i.mods or 'row_bcast' in i.mods)
    if op == 's_nop':
        i.ws = int(o[0], 0) + 1; i.kind = 'nop'; return
    if op.startswith('v_smfmac'):
        i.kind = 'mfma'; i.w = R(0); i.srcA = R(1) | R(3); i.srcB = R(2); i.srcC = R(0); i.r = i.srcA | i.srcB | i.srcC
        i.passes = 8
        return
    if op.startswith('v_mfma'):
        i.kind = 'mfma'; i.w = R(0); i.srcA = R(1); i.srcB = R(2); i.srcC = R(3); i.r = i.srcA | i.srcB | i.srcC
        i.passes = 8 if '32x32x16' in op else 4 if '16x16x32' in op else None
        assert i.passes, op
        return
    if op.startswith('v_cmp'):
        i.kind = 'valu'; i.w = R(0); i.r = R(1) | R(2)
        if op.startswith('v_cmpx'): i.w |= {('s', 'exec')}
        return
    if op in ('v_readfirstlane_b32', 'v_readlane_b32'):
        i.kind = 'valu'; i.w = R(0); i.r = R(1) | R(2); i.lane = True; return
    if (op.startswith('v_permlane') and 'swap' in op) or op == 'v_swap_b32':
        i.kind = 'valu'; i.w = R(0) | R(1); i.r = R(0) | R(1); return
    if op in ('v_add_co_u32', 'v_sub_co_u32'):
        i.kind = 'valu'; i.w = R(0) | R(1); i.r = R(2) | R(3); return
    if op in ('v_addc_co_u32', 'v_subb_co_u32'):
        i.kind = 'valu'; i.w = R(0) | R(1); i.r = R(2) | R(3) | R(4); return
    if op.startswith('v_'):
        i.kind = 'valu'; i.w = R(0)
        for k in range(1, len(o)): i.r |= R(k)
        if op in ('v_fmac_f32', 'v_pk_fmac_f16', 'v_dot2c_f32_bf16') or i.dpp: i.r |= R(0)
        if op == 'v_cndmask_b32' and len(o) == 3: i.r |= {('s', 'vcc')}
        return
    if op in ('buffer_inv', 'buffer_wbl2'):
        i.kind = 'vmem'; return
    if op.startswith('buffer_load') or op.startswith('buffer_atomic') and 'sc0' in i.mods:
        i.kind = 'vmem'
        if 'lds' in i.mods.split():
            i.r = R(0) | R(1) | R(2) | {('s', 'm0')}; i.ldsdma = True
        else:
            i.w = R(0); i.r = R(1) | R(2) | R(3)
        return
    if op.startswith('buffer_store') or op.startswith('buffer_atomic'):
        i.kind = 'vmem'; i.r = R(0) | R(1) | R(2) | R(3); i.sdata = R(0); return
    if op.startswith('global_load_lds'):
        i.kind = 'vmem'; i.r = R(0) | R(1) | {('s', 'm0')}; i.ldsdma = True; return
    if op.startswith('global_load'):
        i.kind = 'vmem'; i.w = R(0); i.r = R(1) | R(2); return
    if op.startswith('global_store'):
        i.kind = 'vmem'; i.r = R(0) | R(1) | R(2); i.sdata = R(1); return
    if op.startswith('global_atomic'):
        i.kind = 'vmem'
        if 'sc0' in i.mods: i.w = R(0); i.r = R(1) | R(2) | R(3)
        else: i.r = R(0) | R(1) | R(2)
        return
    if op.startswith('ds_read') or op.startswith('ds_bpermute') or op.startswith('ds_swizzle') or op.startswith('ds_permute'):
        i.kind = 'ds'; i.w = R(0)
        for k in range(1, len(o)): i.r |= R(k)
        return
    if op.startswith('ds_'):
        i.kind = 'ds'
        if 'rtn' in op:
            i.w = R(0)
            for k in range(1, len(o)): i.r |= R(k)
        else:
            for k in range(0, len(o)): i.r |= R(k)
        return
    if op.startswith('s_'):
        i.kind = 'salu'
        if op.startswith('s_cmp') or op.startswith('s_cbranch') or op in ('s_branch', 's_waitcnt', 's_barrier', 's_endpgm', 's_setprio', 's_sleep', 's_bitcmp1_b32', 's_bitcmp0_b32'):
            for k in range(len(o)): i.r |= R(k)
        else:
            i.w = R(0)
            for k in range(1, len(o)): i.r |= R(k)
            if 'saveexec' in op: i.w |= {('s', 'exec')}
        return
    raise ValueError("unknown op " + i.raw)

def need(p, c):
    n = 0
    vw = {x for x in p.w if x[0] in 'va'}
    sw = {x for x in p.w if x[0] == 's'}
    if p.kind == 'mfma':
        P = p.passes
        if c.kind == 'mfma':
            if c.srcC & p.w:
                if c.srcC == p.w and c.passes == P: n = max(n, 0)
                else: n = max(n, {4: 6, 8: 10}[P])
            if (c.srcA | c.srcB) & p.w: n = max(n, {4: 8, 8: 12}[P])
            if (c.w & p.w) and not (c.srcC & p.w):
                n = max(n, {4: 6, 8: 10}[P]) if c.passes != P else max(n, 0)
        elif c.kind in ('valu', 'vmem', 'ds'):
            if (c.r | c.w) & p.w: n = max(n, {4: 8, 8: 12}[P])
        if c.kind == 'valu' and (c.w & p.srcC): n = max(n, {4: 3, 8: 7}[P])
    if p.kind == 'valu':
        if c.kind == 'mfma' and (c.r & vw): n = max(n, 2)
        if c.kind == 'mfma' and ('s', 'exec') in sw: n = max(n, 4)
        if c.kind == 'vmem' and (c.r & sw): n = max(n, 5)
        if c.kind == 'valu' and (c.r & sw): n = max(n, 2)
        if c.kind == 'valu' and getattr(c, 'lane', False) and (c.r & vw): n = max(n, 1)
        if c.kind == 'valu' and getattr(c, 'lane', False) and (c.r & sw): n = max(n, 4)
        if c.kind == 'valu' and c.dpp and (c.r & vw): n = max(n, 2)
        if c.kind == 'valu' and c.op.startswith('v_permlane') and (c.r & vw): n = max(n, 2)
        if p.op in TRANS and c.kind == 'valu' and c.op not in TRANS and (c.r & vw): n = max(n, 1)
        if p.op in TRANS and c.kind in ('mfma',) and (c.r & vw): n = max(n, 2)
        if ('op_sel' in p.mods or 'dst_sel' in p.mods) and c.kind == 'valu' and ((c.r | c.w) & vw): n = max(n, 1)
    if p.kind == 'salu':
        if ('s', 'm0') in p.w and getattr(c, 'ldsdma', False): n = max(n, 1)
    if p.kind == 'vmem' and hasattr(p, 'sdata') and len(p.sdata) >= 3:
        if c.w & p.sdata: n = max(n, 2 if c.kind == 'valu' else 1)
    return n

def check(text, verbose=True):
    ins, labels = parse(text)
    n = len(ins)
    preds = [[] for _ in range(n + 1)]
    for k, i in enumerate(ins):
        if i.op in ('s_endpgm',): continue
        if i.op == 's_branch':
            preds[labels[i.ops[0]]].append(k); continue
        if i.op.startswith('s_cbranch'):
            preds[labels[i.ops[0]]].append(k)
        preds[k + 1].append(k)
    MAXW = 12
    bad = 0
    for k, c in enumerate(ins):
        if c.kind in ('nop',): continue
        best = {}
        stack = [(p, 0) for p in preds[k]]
        while stack:
            p, d = stack.pop()
            if p in best and best[p] <= d: continue
            best[p] = d
            pi = ins[p]
            nd = need(pi, c)
            if nd > d:
                bad += 1
                if verbose: print(f"HAZARD: line {pi.ln} [{pi.raw}] -> line {c.ln} [{c.raw}] needs {nd} has {d}")
            d2 = d + pi.ws
            if d2 < MAXW:
                for q in preds[p]: stack.append((q, d2))
    return bad

if __name__ == '__main__':
    b = check(open(sys.argv[1]).read())
    print("hazards:", b)
    sys.exit(1 if b else 0)
```
